```python
import torch

def _softmax(x, axis=-1):
    return torch.softmax(x, dim=axis)
def _gelu(x):
    return torch.nn.functional.gelu(x, approximate="tanh")
def _silu(x):
    return torch.nn.functional.silu(x)
def _sigmoid(x):
    return torch.sigmoid(x)
def _layernorm(x, axis=-1, eps=1e-5):
    m = x.mean(dim=axis, keepdim=True)
    v = x.var(dim=axis, keepdim=True, unbiased=False)
    return (x - m) / torch.sqrt(v + eps)
def _scatter_add(tgt, idx, src, axis=0):
    return tgt.clone().index_add_(axis, idx, src)
def _segment_sum(src, seg, n):
    out = torch.zeros((n,) + src.shape[1:], dtype=src.dtype)
    return out.index_add_(0, seg, src)
def _pad(x, pw):
    flat = tuple(v for pair in reversed(pw) for v in pair)
    return torch.nn.functional.pad(x, flat)

kernel_name = 'sequential_preLN__sliding_block_cached__moe_arch_mod__decode'

def setup_inputs():

    _w = (lambda a: (lambda t: t.to(torch.bfloat16) if t.is_floating_point() else t)(torch.as_tensor(a)))
    def _A_setup():
        B, Sq, D = 1, 1, 576
        Hq, Hkv, Sk, Dh = 32, 16, 65536, 128
        assert Hq % Hkv == 0, (Hq, Hkv)
        return {
            "x": _w((lambda *s: torch.randn(*s, dtype=torch.bfloat16) * 0.05)(B, Sq, D)),
            "k_cache": _w((lambda *s: torch.randn(*s, dtype=torch.bfloat16) * 3.2)(B, Hkv, Sk, Dh)),
            "v_cache": _w((lambda *s: torch.randn(*s, dtype=torch.bfloat16) * 0.4)(B, Hkv, Sk, Dh)),
            "wq": _w((lambda *s: torch.randn(*s, dtype=torch.bfloat16) * 3.2)(D, Hq * Dh) * (D ** -0.5)),
            "wo": _w((lambda *s: torch.randn(*s, dtype=torch.bfloat16) * 0.4)(Hq * Dh, D) * ((Hq * Dh) ** -0.5)),
        }
    _A_in = _A_setup()

    def _B_setup():
        B, S, D, F, C = 1, 1, 576, 4608, 1
        return {
            "x": _w((lambda *s: torch.randn(*s, dtype=torch.bfloat16) * 0.05)(B, S, D)),
            "w_r": _w((lambda *s: torch.randn(*s, dtype=torch.bfloat16) * 0.05)(D)),
            "w_gate": _w((lambda *s: torch.randn(*s, dtype=torch.bfloat16) * 0.05)(D, F)),
            "w_up": _w((lambda *s: torch.randn(*s, dtype=torch.bfloat16) * 0.05)(D, F)),
            "w_down": _w((lambda *s: torch.randn(*s, dtype=torch.bfloat16) * 0.05)(F, D)),
        }
    _B_in = _B_setup()

    return {
        "A_x": _A_in["x"],
        "A_k_cache": _A_in["k_cache"],
        "A_v_cache": _A_in["v_cache"],
        "A_wq": _A_in["wq"],
        "A_wo": _A_in["wo"],
        "B_x": _B_in["x"],
        "B_w_r": _B_in["w_r"],
        "B_w_gate": _B_in["w_gate"],
        "B_w_up": _B_in["w_up"],
        "B_w_down": _B_in["w_down"],
    }

def reference(A_x, A_k_cache, A_v_cache, A_wq, A_wo, B_x, B_w_r, B_w_gate, B_w_up, B_w_down):
    def _A_ref(x, k_cache, v_cache, wq, wo):
        B, Sq, D = x.shape
        Hq, Dh = 32, 128
        Hkv, Sk = k_cache.shape[1], k_cache.shape[2]
        W = min(4096, max(256, Sk // 4))
        rep = Hq // Hkv
        q = (lambda x, *d: x.permute(*d))((x @ wq).reshape(B, Sq, Hq, Dh), 0, 2, 1, 3)
        k = (lambda x, n, axis: torch.repeat_interleave(x, n, dim=axis))(k_cache[:, :, Sk - W:, :], rep, axis=1)
        v = (lambda x, n, axis: torch.repeat_interleave(x, n, dim=axis))(v_cache[:, :, Sk - W:, :], rep, axis=1)
        scores = torch.einsum("bhqd,bhkd->bhqk", q, k) * (Dh ** -0.5)
        p = _softmax(scores, axis=-1)
        o = torch.einsum("bhqk,bhkd->bhqd", p, v)
        return (lambda x, *d: x.permute(*d))(o, 0, 2, 1, 3).reshape(B, Sq, Hq * Dh) @ wo

    def _B_ref(x, w_r, w_gate, w_up, w_down):
        B, S, D = x.shape
        C = 1
        r = x @ w_r
        idx = torch.argsort(-r, axis=-1)[:, :C]
        idx_e = (lambda x, n, axis: torch.repeat_interleave(x, n, dim=axis))(idx.reshape(B, C, 1), D, axis=2)
        x_sel = (lambda x, i, axis: torch.take_along_dim(x, i, dim=axis))(x, idx_e, axis=1)
        g = _silu(x_sel @ w_gate)
        u = x_sel @ w_up
        y = (g * u) @ w_down
        r_sel = _sigmoid((lambda x, i, axis: torch.take_along_dim(x, i, dim=axis))(r, idx, axis=1))
        y = y * r_sel.reshape(B, C, 1)
        b_off = (torch.arange(B) * S).reshape(B, 1)
        flat_idx = (idx + b_off).reshape(B * C)
        zero = (x * 0.0).reshape(B * S, D)
        upd = _scatter_add(zero, flat_idx, y.reshape(B * C, D), axis=0)
        return x + upd.reshape(B, S, D)

    x = A_x
    h = x + _A_ref(_layernorm(x, axis=-1), A_k_cache, A_v_cache, A_wq, A_wo)
    h2 = h + _B_ref(_layernorm(h, axis=-1), B_w_r, B_w_gate, B_w_up, B_w_down)
    return h2
```

```python
import re

TRANS = ("v_exp_f32", "v_log_f32", "v_rcp_f32", "v_rsq_f32", "v_sqrt_f32", "v_sin_f32", "v_cos_f32")

def _regs(tok):
    tok = tok.strip()
    out = set()
    m = re.fullmatch(r"-?(?:abs\()?\|?([vsa])(\d+)\|?\)?", tok)
    if m:
        out.add((m.group(1), int(m.group(2)))); return out
    m = re.fullmatch(r"-?([vsa])\[(\d+):(\d+)\]", tok)
    if m:
        for i in range(int(m.group(2)), int(m.group(3)) + 1): out.add((m.group(1), i))
        return out
    if tok in ("vcc", "vcc_lo", "vcc_hi"): out.add(("vcc", 0))
    if tok in ("exec", "exec_lo", "exec_hi"): out.add(("exec", 0))
    if tok == "m0": out.add(("m0", 0))
    return out

class Ins:
    def __init__(self, text):
        self.text = text
        t = text.split(";")[0].strip()
        parts = t.split(None, 1)
        self.op = parts[0]
        rest = parts[1] if len(parts) > 1 else ""
        ops = [x.strip() for x in rest.split(",")]
        clean = []
        self.mods = ""
        for i, x in enumerate(ops):
            if i == len(ops) - 1:
                sp = x.split(None, 1)
                if sp:
                    clean.append(sp[0]); self.mods = sp[1] if len(sp) > 1 else ""
            else:
                clean.append(x)
        self.ops = clean
        op = self.op
        self.valu = op.startswith("v_") and not op.startswith("v_mfma")
        self.mfma = op.startswith("v_mfma")
        self.vmem = op.startswith(("buffer_", "global_", "flat_"))
        self.ds = op.startswith("ds_")
        self.salu = op.startswith("s_")
        self.dpp = "_dpp" in op or "row_" in self.mods or "quad_perm" in self.mods
        self.trans = op.replace("_e32", "").replace("_e64", "") in TRANS
        self.perm = op.startswith("v_permlane")
        self.readlane = op.startswith(("v_readlane", "v_readfirstlane"))
        W = set(); R = set()
        o = [_regs(x) for x in clean]
        if self.valu or self.mfma:
            if self.perm:
                W |= o[0] | o[1]; R |= o[0] | o[1]
            elif op.startswith(("v_add_co", "v_sub_co", "v_addc_co", "v_subb_co", "v_subrev_co")):
                W |= o[0] | o[1]
                for x in o[2:]: R |= x
            else:
                W |= o[0]
                for x in o[1:]: R |= x
                if op.startswith(("v_fmac", "v_dot2c", "v_writelane")) or (self.dpp and False): R |= o[0]
                if op.startswith("v_cmpx"): W.add(("exec", 0))
                if op.startswith("v_cndmask") and len(o) == 3: R.add(("vcc", 0))
        elif self.vmem or self.ds:
            isload = ("_load" in op or op.startswith(("ds_read", "ds_bpermute", "ds_permute", "ds_swizzle"))) and " lds" not in (" " + self.mods)
            if isload:
                W |= o[0]
                for x in o[1:]: R |= x
            else:
                for x in o: R |= x
        elif self.salu:
            if op.startswith(("s_cmp", "s_cbranch", "s_branch", "s_waitcnt", "s_nop", "s_barrier", "s_sleep", "s_setprio", "s_endpgm", "s_bitcmp")):
                for x in o: R |= x
            else:
                if o: W |= o[0]
                for x in o[1:]: R |= x
                if "saveexec" in op: W.add(("exec", 0))
        self.W = W; self.R = R
        self.srcC = o[3] if self.mfma else set()
        self.srcAB = (o[1] | o[2]) if self.mfma else set()
        self.wide_store = (self.vmem and "store" in op and ("x4" in op or "x3" in op))
        self.store_data = set()
        if self.wide_store:
            self.store_data = o[0] if op.startswith("buffer_") else o[1]
        self.states = 1
        if op == "s_nop": self.states = int(clean[0], 0) + 1

def need(prev, cur):
    n = 0
    pv = {r for r in prev.W if r[0] in "va"}
    ps = {r for r in prev.W if r[0] in ("s", "vcc")}
    if prev.valu:
        if cur.dpp and (pv & cur.R): n = max(n, 2)
        if cur.perm and (pv & cur.R): n = max(n, 2)
        if cur.mfma and (pv & cur.R): n = max(n, 2)
        if cur.readlane and (pv & cur.R): n = max(n, 1)
        if prev.trans and cur.valu and not cur.trans and (pv & cur.R): n = max(n, 1)
        if prev.trans and (cur.mfma or cur.vmem or cur.ds) and (pv & cur.R): n = max(n, 1)
        if ps & cur.R:
            if cur.valu or cur.mfma: n = max(n, 4 if cur.readlane or cur.op.startswith("v_writelane") else 2)
            if cur.vmem: n = max(n, 5)
            if cur.salu: n = max(n, 1)
        if ("exec", 0) in prev.W:
            if cur.dpp: n = max(n, 5)
            if cur.readlane or cur.perm or cur.mfma: n = max(n, 4)
            if cur.valu: n = max(n, 2)
        if "sdwa" in prev.op and cur.valu and (pv & (cur.R | cur.W)): n = max(n, 1)
    if prev.mfma:
        passes = 4 if "16x16x32" in prev.op else 8
        d_all = {4: 8, 8: 12}[passes]
        if cur.mfma:
            if pv & cur.srcAB: n = max(n, d_all)
            if pv & cur.srcC and cur.srcC != pv: n = max(n, {4: 6, 8: 10}[passes])
            if (pv & cur.W) and cur.srcC != pv: n = max(n, d_all)
        elif cur.valu or cur.vmem or cur.ds:
            if pv & (cur.R | cur.W): n = max(n, d_all)
        if cur.valu and (prev.srcC & cur.W): n = max(n, {4: 3, 8: 7}[passes])
    if prev.wide_store and (prev.store_data & cur.W): n = max(n, 2)
    if prev.salu and ("m0", 0) in prev.W and (cur.vmem or cur.ds): n = max(n, 1)
    if (prev.vmem or prev.ds) and cur.dpp and (pv & cur.R): n = max(n, 0)
    return n

class Asm:
    def __init__(self):
        self.lines = []
        self.hist = []
    def raw(self, s):
        self.lines.append(s)
    def label(self, name):
        self.lines.append(name + ":")
    def fence(self):
        self.hist = []
    def __call__(self, text):
        for t in text.split("\n"):
            t = t.strip()
            if not t or t.startswith(";"):
                if t: self.lines.append("    " + t)
                continue
            if t.endswith(":"):
                self.label(t[:-1]); continue
            ins = Ins(t)
            dist = 0; req = 0
            for p in reversed(self.hist):
                r = need(p, ins) - dist
                req = max(req, r)
                dist += p.states
                if dist > 20: break
            if req > 0:
                nop = Ins(f"s_nop {req-1}")
                self.lines.append(f"    s_nop {req-1}")
                self.hist.append(nop)
            self.lines.append("    " + t)
            self.hist.append(ins)
            if len(self.hist) > 40: self.hist = self.hist[-40:]
            if ins.op in ("s_branch", "s_endpgm"): self.hist = []
    def text(self):
        return "\n".join(self.lines) + "\n"
```

```python
import sys
from asmlib import Asm
NAME = "sequential_preLN__sliding_block_cached__moe_arch_mod__decode"

H1_BASE = 0x1000
H2_BASE = 0x21000; H2_STRIDE = 8576
H3_BASE = 0xA7000; H3_STRIDE = 1152
H4_BASE = 0xF8000; H4_STRIDE = 2432; H4_REPS = 8
H5_BASE = 0xFD000; H5_STRIDE = 2432
WS_USED = 0x1A8000
STAMP_BASE = 0x400000
L_VEC = 0x0000
L_QB = 0x0900
L_KVF = 0x0B00
L_KIF = 0x0B20
L_QF = 0x0B40
L_PUB = 0x0B44
L_ML = 0x0B80
L_OP = 0x0C00
L_GU = 0x2C00
L_ACT = 0x3400
LDS_BYTES = 0x3800
LOG2E = 0x3fb8aa3b
SCALE = 0x3db504f3
INV576 = 0x3ae38e39
EPS = 0x3727c5ac
SPIN = 1 << 18

HEADER = open("cdna_kernels/" + NAME + ".s.ref").read().split("; Override launch")[0]

def gen(diag=False, opt=None):
    opt = opt or {}
    a = Asm()
    nst = [0]
    def stamp(i):
        if diag: a(f"s_memrealtime s[{64+2*i}:{65+2*i}]")
    uid = [0]
    def lbl(p):
        uid[0] += 1; return f"L_{p}_{uid[0]}"

    def wave_sum(x, t, op="add"):
        for r in (8, 4, 2, 1):
            a(f"v_{op}_f32_dpp v{x}, v{x}, v{x} row_ror:{r} row_mask:0xf bank_mask:0xf")
        a(f"v_mov_b32 v{t}, v{x}"); a(f"v_permlane16_swap_b32 v{x}, v{t}"); a(f"v_{op}_f32 v{x}, v{x}, v{t}")
        a(f"v_mov_b32 v{t}, v{x}"); a(f"v_permlane32_swap_b32 v{x}, v{t}"); a(f"v_{op}_f32 v{x}, v{x}, v{t}")
    def rnd(x):
        a(f"v_cvt_pk_bf16_f32 v{x}, v{x}, v{x}"); a(f"v_and_b32 v{x}, 0xffff0000, v{x}")
    def masks():
        a("v_and_b32 v8, 1, v1"); a("v_lshlrev_b32 v8, 4, v8"); a("v_mov_b32 v9, 0xffff"); a("v_lshlrev_b32 v8, v8, v9")
        a("v_bfe_u32 v9, v1, 1, 2")
        for d in range(4):
            a(f"v_cmp_eq_u32 vcc, {d}, v9"); a(f"v_cndmask_b32 v{4+d}, 0, v8, vcc")
    def tag_ready():
        a("s_waitcnt lgkmcnt(0)")
        a("s_mul_i32 s48, s48, 1664525"); a("s_add_u32 s48, s48, 1013904223")
    def spin_tail(top, sleep=None):
        if sleep is not None: a(f"s_sleep {sleep}")
        a("s_sub_u32 s60, s60, 1"); a("s_cmp_lg_u32 s60, 0"); a(f"s_cbranch_scc1 {top}"); a("s_branch L_exit")
    def check_tags(regs, acc):
        a(f"v_xor_b32 v{acc}, s48, v{regs[0]}")
        for r in regs[1:]: a(f"v_bitop3_b32 v{acc}, v{acc}, v{r}, s48 bitop3:0xf6")
        a(f"v_cmp_ne_u32 vcc, 0, v{acc}")
    def wait_kv_flags(tmp_addr, tmp, off=L_KVF, n=8):
        top = lbl("kvf"); done = lbl("kvfd")
        a(f"v_and_b32 v{tmp_addr}, {n-1}, v1"); a(f"v_lshlrev_b32 v{tmp_addr}, 2, v{tmp_addr}")
        a(f"{top}:")
        a(f"ds_read_b32 v{tmp}, v{tmp_addr} offset:{off}"); a("s_waitcnt lgkmcnt(0)")
        a(f"v_cmp_eq_u32 vcc, 0, v{tmp}"); a(f"s_cbranch_vccz {done}")
        spin_tail(top, 2)
        a(f"{done}:")
    def wgate(mode):
        if mode == "issued": wait_kv_flags(10, 11, L_KIF)
        elif mode == "done": wait_kv_flags(10, 11, L_KVF)
        elif mode == "pub": wait_kv_flags(10, 11, L_PUB, 1)
    def throttle(i, depth):
        if depth and i >= depth: a(f"s_waitcnt vmcnt({depth-1})")
    def layernorm(P, F, T):
        for i in range(6):
            a(f"v_lshlrev_b32 v{F+2*i}, 16, v{P[i]}"); a(f"v_and_b32 v{F+2*i+1}, 0xffff0000, v{P[i]}")
        S = T; U = T + 1; M = T + 2; Q = T + 3; D = T + 4
        for i in range(6): a(f"v_add_f32 v{D+i}, v{F+2*i}, v{F+2*i+1}")
        a(f"v_add_f32 v{D}, v{D}, v{D+1}"); a(f"v_add_f32 v{D+2}, v{D+2}, v{D+3}"); a(f"v_add_f32 v{D+4}, v{D+4}, v{D+5}")
        a(f"v_add_f32 v{S}, v{D}, v{D+2}"); a(f"v_add_f32 v{S}, v{S}, v{D+4}")
        a(f"v_mov_b32 v{Q}, 0")
        wave_sum(S, U)
        a(f"v_mul_f32 v{S}, {INV576:#x}, v{S}")
        a("s_mov_b64 exec, s[56:57]")
        for i in range(12): a(f"v_sub_f32 v{D+i}, v{F+i}, v{S}")
        for i in range(12): a(f"v_fmac_f32 v{Q}, v{D+i}, v{D+i}")
        a("s_mov_b64 exec, -1")
        a(f"v_mov_b32 v{M}, v{S}"); rnd(M)
        wave_sum(Q, U)
        for i in range(12): a(f"v_sub_f32 v{F+i}, v{F+i}, v{M}")
        a(f"v_mul_f32 v{Q}, {INV576:#x}, v{Q}"); rnd(Q)
        a(f"v_add_f32 v{Q}, {EPS:#x}, v{Q}"); rnd(Q)
        a(f"v_sqrt_f32 v{Q}, v{Q}"); rnd(Q)
        a(f"v_rcp_f32 v{Q}, v{Q}")
        for i in range(6): a(f"v_cvt_pk_bf16_f32 v{D+i}, v{F+2*i}, v{F+2*i+1}")
        for i in range(6):
            a(f"v_lshlrev_b32 v{F+2*i}, 16, v{D+i}"); a(f"v_and_b32 v{F+2*i+1}, 0xffff0000, v{D+i}")
        for i in range(12): a(f"v_mul_f32 v{F+i}, v{F+i}, v{Q}")
        for i in range(12): a(f"v_cvt_pk_bf16_f32 v{F+i}, v{F+i}, v{F+i}")
    def vec_write(F, addr):
        a(f"v_lshlrev_b32 v{addr}, 4, v1")
        a("s_mov_b64 exec, s[56:57]")
        for u in range(3): a(f"ds_write_b128 v{addr}, v[{F+4*u}:{F+4*u+3}] offset:{L_VEC+768*u}")
        a("s_mov_b64 exec, -1")
    def sel_mfma(vals, wregs, accs, AB=104, waits=None):
        n = len(vals)
        def ands(t):
            b = AB + 4 * (t & 1)
            for d in range(4): a(f"v_and_b32 v{b+d}, v{vals[t]}, v{4+d}")
        ands(0)
        for t in range(n):
            if t + 1 < n: ands(t + 1)
            if waits and waits[t] is not None: a(waits[t])
            b = AB + 4 * (t & 1)
            for w, c in zip(wregs[t], accs):
                cs = "0" if t == 0 else f"v[{c}:{c+3}]"
                a(f"v_mfma_f32_16x16x32_bf16 v[{c}:{c+3}], v[{b}:{b+3}], v[{w}:{w+3}], {cs}")
    def fold(c, d0, d1):
        a(f"v_permlane32_swap_b32 v{c}, v{c+2}"); a(f"v_permlane32_swap_b32 v{c+1}, v{c+3}")
        a(f"v_add_f32_dpp v{d0}, v{c+2}, v{c} row_ror:8 row_mask:0xf bank_mask:0xf")
        a(f"v_add_f32_dpp v{d1}, v{c+3}, v{c+1} row_ror:8 row_mask:0xf bank_mask:0xf")
    def cp_local(dst, t):
        a(f"v_and_b32 v{dst}, 7, v1"); a(f"v_lshlrev_b32 v{dst}, 2, v{dst}")
        a(f"v_bfe_u32 v{t}, v1, 4, 1"); a(f"v_lshl_add_u32 v{dst}, v{t}, 1, v{dst}")
        a(f"v_lshrrev_b32 v{t}, 5, v1"); a(f"v_add_u32 v{dst}, v{dst}, v{t}")
    def cls(dst):
        a(f"v_bfe_u32 v{dst}, v1, 3, 1"); a(f"v_lshl_add_u32 v{dst}, v{dst}, 2, v3")
    def srd(base, ptr, size):
        a(f"s_mov_b32 s{base}, s{ptr}"); a(f"s_mov_b32 s{base+1}, s{ptr+1}"); a(f"s_mov_b32 s{base+2}, {size:#x}"); a(f"s_mov_b32 s{base+3}, 0x20000")

    a.raw(HEADER.rstrip())
    a.raw(f"; @launch grid=(256,1,1) block=(1024,1,1) lds={LDS_BYTES}")
    a.raw('.amdgcn_target "amdgcn-amd-amdhsa--gfx950"')
    a.raw(".text"); a.raw(f".globl {NAME}_kernel"); a.raw(".p2align 8"); a.raw(f".type {NAME}_kernel,@function")
    a.raw(f"{NAME}_kernel:")
    if diag:
        for i in range(1, 8): a(f"s_mov_b64 s[{64+2*i}:{65+2*i}], 0")
    stamp(0)
    a("s_cmp_ge_u32 s2, 256"); a("s_cbranch_scc1 L_end")
    a("s_load_dwordx16 s[4:19], s[0:1], 0")
    a("s_load_dwordx8 s[20:27], s[0:1], 64")
    a("s_load_dwordx2 s[28:29], s[0:1], 96")
    a("v_lshrrev_b32 v2, 6, v0")
    a("v_and_b32 v1, 63, v0")
    a("v_readfirstlane_b32 s3, v2")
    a("v_lshlrev_b32 v4, 2, v1"); a("v_mov_b32 v5, 0")
    a("s_mov_b32 exec_hi, 0"); a(f"ds_write_b32 v4, v5 offset:{L_KVF}"); a("s_mov_b64 exec, -1")
    a("v_and_b32 v2, 15, v1"); a("v_lshrrev_b32 v3, 4, v1")
    a("s_and_b32 s49, s2, 7"); a("s_lshr_b32 s51, s2, 7"); a("s_lshl_b32 s51, s51, 3"); a("s_add_u32 s49, s49, s51")
    a("s_lshr_b32 s50, s2, 3"); a("s_and_b32 s50, s50, 15")
    a(f"s_mov_b32 s60, {SPIN}")
    a("s_mov_b32 s56, -1"); a("s_mov_b32 s57, 0xffff")
    a("s_mov_b32 s58, 0x00ff00ff"); a("s_mov_b32 s59, 0x00ff00ff")
    a("s_waitcnt lgkmcnt(0)")
    a("s_load_dword s48, s[28:29], 0")
    srd(32, 28, WS_USED if not diag else 0x800000)
    a("s_cmp_ge_u32 s3, 8"); a("s_cbranch_scc1 L_W")

    a("s_setprio 2")
    srd(36, 6, 0x10000000); srd(40, 8, 0x10000000)
    a("s_lshl_b32 s51, s49, 24"); a("s_lshl_b32 s52, s50, 16"); a("s_add_u32 s51, s51, s52")
    a("s_lshl_b32 s52, s3, 13"); a("s_add_u32 s51, s51, s52"); a("s_add_u32 s51, s51, 0xF00000")
    a("s_add_u32 s52, s51, 4096")
    a("v_lshlrev_b32 v96, 8, v2"); a("v_lshl_add_u32 v96, v3, 4, v96")
    a("v_lshlrev_b32 v97, 10, v3"); a("v_lshl_add_u32 v97, v2, 4, v97")
    a("s_barrier")
    kd = opt.get("kvdepth", 4)
    for T in range(2):
        for s in range(4):
            r = 32 + 16 * T + 4 * s
            throttle(4 * T + s, kd)
            a(f"buffer_load_dwordx4 v[{r}:{r+3}], v96, s[36:39], s{51+T} offen offset:{64*s} nt")
    for T in range(2):
        for rr in range(4):
            r = 64 + 16 * T + 4 * rr
            throttle(8 + 4 * T + rr, kd)
            a(f"buffer_load_dwordx4 v[{r}:{r+3}], v97, s[40:43], s{51+T} offen offset:{256*rr} nt")
    a("s_lshl_b32 s61, s3, 2"); a("v_mov_b32 v116, s61"); a("v_mov_b32 v117, 1")
    a(f"ds_write_b32 v116, v117 offset:{L_KIF}")
    stamp(1)
    masks()
    tag_ready()
    for r in (101, 103, 105, 107, 109, 111): a(f"v_mov_b32 v{r}, s48")
    a("v_lshrrev_b32 v112, 5, v1"); a("v_bfe_u32 v113, v1, 3, 1"); a("v_lshl_add_u32 v112, v112, 1, v113")
    a(f"v_mul_u32_u24 v114, {H2_STRIDE}, v112")
    a("v_and_b32 v112, 7, v1"); a("v_lshlrev_b32 v112, 6, v112"); a("v_bfe_u32 v113, v1, 4, 1"); a("v_lshl_add_u32 v112, v113, 5, v112")
    a("v_add_u32 v112, v112, v114")
    a(f"s_mul_i32 s53, s49, {4*H2_STRIDE}"); a(f"s_add_u32 s53, s53, {H2_BASE}")
    a("s_lshl_b32 s54, s50, 9"); a("s_add_u32 s54, s54, s53")
    a("s_lshl_b32 s55, s50, 4"); a("s_add_u32 s55, s55, s53"); a("s_add_u32 s55, s55, 8192")
    a("v_bfe_u32 v98, v1, 3, 1"); a("v_lshlrev_b32 v98, 8, v98"); a("v_lshl_add_u32 v98, v3, 4, v98")
    a("v_mov_b32 v99, 0")
    top = lbl("qf"); done = lbl("qfd")
    a(f"{top}:")
    a(f"ds_read_b32 v115, v99 offset:{L_QF}"); a("s_waitcnt lgkmcnt(0)")
    a("v_cmp_ne_u32 vcc, 0, v115"); a(f"s_cbranch_vccnz {done}")
    spin_tail(top, 2)
    a(f"{done}:")
    for s in range(4): a(f"ds_read_b128 v[{16+4*s}:{19+4*s}], v98 offset:{L_QB+64*s}")
    a("s_waitcnt lgkmcnt(0)")
    stamp(2)
    for T in range(2):
        a(f"s_waitcnt vmcnt({12-4*T})")
        for s in range(4):
            r = 32 + 16 * T + 4 * s; c = 8 + 4 * T
            cs = "0" if s == 0 else f"v[{c}:{c+3}]"
            a(f"v_mfma_f32_16x16x32_bf16 v[{c}:{c+3}], v[{r}:{r+3}], v[{16+4*s}:{19+4*s}], {cs}")
    for i in range(4): a(f"v_cvt_pk_bf16_f32 v{16+i}, v{8+2*i}, v{9+2*i}")
    for i in range(4): a(f"v_lshlrev_b32 v{8+2*i}, 16, v{16+i}"); a(f"v_and_b32 v{9+2*i}, 0xffff0000, v{16+i}")
    for i in range(8): a(f"v_mul_f32 v{8+i}, {SCALE:#x}, v{8+i}")
    for i in range(4): a(f"v_cvt_pk_bf16_f32 v{16+i}, v{8+2*i}, v{9+2*i}")
    for i in range(4): a(f"v_lshlrev_b32 v{8+2*i}, 16, v{16+i}"); a(f"v_and_b32 v{9+2*i}, 0xffff0000, v{16+i}")
    a("v_max3_f32 v20, v8, v9, v10"); a("v_max3_f32 v21, v11, v12, v13"); a("v_max3_f32 v20, v20, v14, v15"); a("v_max_f32 v20, v20, v21")
    a("v_mov_b32 v21, v20"); a("v_permlane16_swap_b32 v20, v21"); a("v_max_f32 v20, v20, v21")
    a("v_mov_b32 v21, v20"); a("v_permlane32_swap_b32 v20, v21"); a("v_max_f32 v20, v20, v21")
    a(f"s_mov_b32 s61, {LOG2E:#x}")
    a("v_mul_f32 v20, s61, v20")
    for i in range(8): a(f"v_fma_f32 v{8+i}, v{8+i}, s61, -v20")
    for i in range(8): a(f"v_exp_f32 v{8+i}, v{8+i}")
    for i in range(8): a(f"v_cvt_pk_bf16_f32 v{24+i}, v{8+i}, v{8+i}")
    a("v_add_f32 v21, v8, v9"); a("v_add_f32 v22, v10, v11"); a("v_add_f32 v23, v12, v13"); a("v_add_f32 v8, v14, v15")
    a("v_add_f32 v21, v21, v22"); a("v_add_f32 v23, v23, v8"); a("v_add_f32 v21, v21, v23")
    a("v_mov_b32 v22, v21"); a("v_permlane16_swap_b32 v21, v22"); a("v_add_f32 v21, v21, v22")
    a("v_mov_b32 v22, v21"); a("v_permlane32_swap_b32 v21, v22"); a("v_add_f32 v21, v21, v22")
    a("v_bfe_u32 v22, v1, 3, 1"); a("v_lshlrev_b32 v22, 6, v22"); a("s_lshl_b32 s61, s3, 3"); a("v_add_u32 v22, s61, v22")
    a("s_mov_b64 exec, 0x101"); a(f"ds_write_b64 v22, v[20:21] offset:{L_ML}"); a("s_mov_b64 exec, -1")
    a("s_lshl_b32 s61, s3, 10"); a("v_lshlrev_b32 v23, 4, v1"); a("v_add_u32 v22, s61, v23")
    stamp(3)
    sel_mfma([24 + i for i in range(8)], [[64 + 4 * i] for i in range(8)], [8], AB=32, waits=[f"s_waitcnt vmcnt({7-i})" for i in range(8)])
    a(f"ds_write_b128 v22, v[8:11] offset:{L_OP}")
    a("v_and_b32 v13, 7, v1"); a("v_lshlrev_b32 v13, 2, v13")
    a("s_waitcnt lgkmcnt(0)")
    a(f"ds_write_b32 v116, v117 offset:{L_KVF}")
    a(f"ds_read_b32 v14, v13 offset:{L_KVF}")
    a("v_lshrrev_b32 v15, 5, v1"); a("v_lshlrev_b32 v15, 6, v15"); a("v_lshl_add_u32 v15, v13, 1, v15")
    a("s_waitcnt lgkmcnt(0)")
    stamp(4)
    a("v_cmp_eq_u32 vcc, 0, v14"); a("s_cbranch_vccnz L_kv_after")
    a(f"ds_read_b64 v[16:17], v15 offset:{L_ML}")
    for k in range(8): a(f"ds_read_b128 v[{32+4*k}:{35+4*k}], v23 offset:{L_OP+1024*k}")
    a("s_waitcnt lgkmcnt(8)" if not diag else "s_waitcnt lgkmcnt(0)")
    a("v_max_f32_dpp v108, v16, v16 row_ror:4 row_mask:0xf bank_mask:0xf")
    a("v_max_f32_dpp v108, v108, v108 row_ror:2 row_mask:0xf bank_mask:0xf")
    a("v_max_f32_dpp v108, v108, v108 row_ror:1 row_mask:0xf bank_mask:0xf")
    a("v_sub_f32 v16, v16, v108"); a("v_exp_f32 v16, v16")
    a("v_mul_f32 v110, v16, v17")
    a("s_waitcnt lgkmcnt(0)")
    for k in range(8):
        for r in range(4):
            op = "v_mul_f32_dpp" if k == 0 else "v_fmac_f32_dpp"
            a(f"{op} v{100+2*r}, v16, v{32+4*k+r} row_newbcast:{k} row_mask:0xf bank_mask:0xf")
        if k in (0, 1, 2):
            a(f"v_add_f32_dpp v110, v110, v110 row_ror:{4>>k} row_mask:0xf bank_mask:0xf")
    a("buffer_store_dwordx4 v[100:103], v112, s[32:35], s54 offen sc1")
    a("buffer_store_dwordx4 v[104:107], v112, s[32:35], s54 offen offset:16 sc1")
    a("s_mov_b32 exec_lo, 0x101"); a("s_mov_b32 exec_hi, 0x101")
    a("buffer_store_dwordx4 v[108:111], v114, s[32:35], s55 offen sc1")
    a("s_mov_b64 exec, -1")
    a(f"ds_write_b32 v99, v117 offset:{L_PUB}")
    stamp(5)
    a("L_kv_after:")
    a("s_cmp_lg_u32 s3, 0"); a("s_cbranch_scc1 L_exit")
    a("s_cmp_ge_u32 s50, 13"); a("s_cbranch_scc1 L_exit")
    a("s_setprio 3")
    wait_kv_flags(13, 14)
    a("s_cmp_lt_u32 s50, 9"); a("s_cbranch_scc1 L_h4poll")
    a("s_sub_u32 s61, s50, 9"); a(f"s_mul_i32 s61, s61, {H2_STRIDE}"); a("s_add_u32 s53, s53, s61")
    a("s_add_u32 s54, s53, 4096"); a("s_add_u32 s55, s53, 8192")
    a("v_lshrrev_b32 v12, 5, v1"); a("v_xor_b32 v12, v12, v2"); a("v_lshlrev_b32 v12, 4, v12")
    top = lbl("h2"); done = lbl("h2d")
    a(f"{top}:")
    a("buffer_load_dwordx4 v[64:67], v12, s[32:35], s55 offen sc1")
    for u in range(8):
        a(f"buffer_load_dwordx4 v[{32+4*u}:{35+4*u}], v23, s[32:35], s{53+(u>>2)} offen offset:{1024*(u&3)} sc1")
    a("s_waitcnt vmcnt(0)")
    check_tags([65, 67] + [33 + 2 * i for i in range(16)], 13)
    a(f"s_cbranch_vccz {done}")
    spin_tail(top)
    a(f"{done}:")
    stamp(6)
    a("v_max_f32_dpp v16, v64, v64 row_ror:8 row_mask:0xf bank_mask:0xf")
    for r in (4, 2, 1): a(f"v_max_f32_dpp v16, v16, v16 row_ror:{r} row_mask:0xf bank_mask:0xf")
    a("v_sub_f32 v16, v64, v16"); a("v_exp_f32 v16, v16")
    a("v_mul_f32 v17, v16, v66")
    for u in range(8):
        for e in range(2):
            op = "v_mul_f32_dpp" if u == 0 else "v_fmac_f32_dpp"
            a(f"{op} v{18+e}, v16, v{32+4*u+2*e} row_newbcast:{2*u} row_mask:0xf bank_mask:0xf")
        if u < 4: a(f"v_add_f32_dpp v17, v17, v17 row_ror:{8>>u} row_mask:0xf bank_mask:0xf")
    a("v_rcp_f32 v17, v17")
    a("v_permlane32_swap_b32 v18, v19")
    a("v_add_f32 v18, v18, v19")
    a("v_mul_f32 v18, v18, v17")
    a("v_cvt_pk_bf16_f32 v18, v18, v18")
    a("v_and_b32 v19, 31, v1"); a("v_lshlrev_b32 v19, 3, v19"); a("v_lshrrev_b32 v20, 5, v1"); a("v_lshl_add_u32 v19, v20, 2, v19")
    a(f"ds_write_b32 v19, v18 offset:{L_VEC}")
    a("s_waitcnt lgkmcnt(0)")
    a("s_barrier")
    stamp(7)
    a("s_branch L_exit")

    a("L_h4poll:")
    a("s_and_b32 s61, s2, 7"); a(f"s_mul_i32 s61, s61, {H4_STRIDE}"); a(f"s_add_u32 s53, s61, {H4_BASE}")
    a("v_lshlrev_b32 v23, 4, v1")
    for r in range(32, 44, 2): a(f"v_mov_b32 v{r}, 0"); a(f"v_mov_b32 v{r+1}, s48")
    top = lbl("h4"); done = lbl("h4d")
    a(f"{top}:")
    a("s_mov_b64 exec, s[56:57]")
    for u in range(3): a(f"buffer_load_dwordx4 v[{32+4*u}:{35+4*u}], v23, s[32:35], s53 offen offset:{768*u} sc1")
    a("s_mov_b64 exec, -1")
    a("s_waitcnt vmcnt(0)")
    check_tags([33 + 2 * i for i in range(6)], 13)
    a(f"s_cbranch_vccz {done}")
    spin_tail(top, opt.get("h4sleep", 1))
    a(f"{done}:")
    stamp(6)
    layernorm([32 + 2 * i for i in range(6)], 44, 56)
    a("s_cmp_ge_u32 s3, 8"); a("s_cbranch_scc1 L_stats")
    vec_write(44, 12)
    a("s_waitcnt lgkmcnt(0)")
    a("s_barrier")
    stamp(7)
    a("s_branch L_exit")
    a("L_stats:")
    a("v_mov_b32 v56, 0")
    for i in range(6):
        a(f"v_and_b32 v57, 0xffff0000, v{44+2*i}"); a(f"v_lshlrev_b32 v58, 16, v{80+i}"); a("v_fmac_f32 v56, v57, v58")
        a(f"v_and_b32 v57, 0xffff0000, v{45+2*i}"); a(f"v_and_b32 v58, 0xffff0000, v{80+i}"); a("v_fmac_f32 v56, v57, v58")
    wave_sum(56, 57)
    rnd(56)
    a(f"v_mul_f32 v56, {0xbfb8aa3b:#x}, v56"); a("v_exp_f32 v56, v56"); a("v_add_f32 v56, 1.0, v56"); a("v_rcp_f32 v56, v56")
    rnd(56)
    a(f"v_mul_u32_u24 v57, {2*H5_STRIDE}, v1")
    a("s_mov_b32 s61, 0xffff")
    a("s_mov_b64 exec, s[56:57]")
    for u in range(3):
        for e in range(2):
            b = 88 + 4 * ((2 * u + e) & 1)
            a(f"v_bfi_b32 v{b}, s61, v{44+4*u+2*e}, v{45+4*u+2*e}")
            a(f"v_mov_b32 v{b+1}, s48"); a(f"v_mov_b32 v{b+2}, v56"); a(f"v_mov_b32 v{b+3}, s48")
            a(f"s_mov_b32 s62, {H5_BASE + 144*16 + (96*u+e)*H5_STRIDE}")
            a(f"buffer_store_dwordx4 v[{b}:{b+3}], v57, s[32:35], s62 offen sc1")
    a("s_mov_b64 exec, -1")
    stamp(7)
    a("s_branch L_exit")

    a("L_W:")
    a("s_sub_u32 s63, s3, 8")
    a("s_cmp_lg_u32 s63, 0"); a("s_cbranch_scc1 L_W_role")
    a("s_setprio 3")
    srd(44, 4, 1152); srd(36, 10, 576 * 8192)
    for r in range(8, 14): a(f"v_mov_b32 v{r}, 0")
    a("v_lshlrev_b32 v120, 3, v1")
    a("s_mov_b64 exec, s[56:57]")
    for u in range(3): a(f"buffer_load_dwordx2 v[{8+2*u}:{9+2*u}], v120, s[44:47], 0 offen offset:{384*u}")
    a("s_mov_b64 exec, -1")
    cls(121)
    a("v_and_b32 v122, 7, v1"); a("v_lshlrev_b32 v122, 4, v122"); a("v_lshl_add_u32 v122, v121, 13, v122")
    a("s_lshr_b32 s51, s50, 2"); a("s_lshl_b32 s52, s51, 17"); a("s_lshl_b32 s53, s49, 9"); a("s_add_u32 s52, s52, s53")
    a("s_and_b32 s53, s50, 3"); a("s_lshl_b32 s54, s53, 7"); a("s_add_u32 s52, s52, s54")
    for t in range(9):
        a(f"buffer_load_dwordx4 v[{32+8*t}:{35+8*t}], v122, s[36:39], s52 offen nt")
        a("s_add_u32 s54, s52, 65536")
        a(f"buffer_load_dwordx4 v[{36+8*t}:{39+8*t}], v122, s[36:39], s54 offen nt")
        if t < 8: a("s_add_u32 s52, s52, 524288")
    a("s_barrier")
    stamp(1)
    a("s_waitcnt vmcnt(18)")
    layernorm([8 + i for i in range(6)], 16, 104)
    vec_write(16, 120)
    masks()
    a("s_lshl_b32 s54, s51, 6"); a("v_lshl_add_u32 v120, v121, 2, s54"); a("v_add_u32 v123, 32, v120")
    a("s_waitcnt lgkmcnt(0)")
    for kk, ad in ((0, 120), (1, 123)):
        b = 8 + 10 * kk
        for t in range(0, 8, 2): a(f"ds_read2st64_b32 v[{b+t}:{b+t+1}], v{ad} offset0:{t} offset1:{t+1}")
        a(f"ds_read_b32 v{b+8}, v{ad} offset:{8*256}")
    tag_ready()
    vals = []; wr = []; waits = []
    for t in range(9):
        for kk in range(2):
            vals.append(8 + 10 * kk + t); wr.append([32 + 8 * t + 4 * kk]); waits.append(f"s_waitcnt vmcnt({17-2*t-kk})")
    sel_mfma(vals, wr, [112], AB=104, waits=waits)
    a("v_mov_b32 v117, s48"); a("v_mov_b32 v119, s48")
    cp_local(120, 123); a("v_lshlrev_b32 v120, 4, v120")
    a("s_lshl_b32 s52, s49, 13"); a(f"s_add_u32 s52, s52, {H1_BASE}")
    a("s_lshl_b32 s54, s51, 11"); a("s_add_u32 s54, s54, s52"); a("s_lshl_b32 s55, s53, 9"); a("s_add_u32 s54, s54, s55")
    fold(112, 116, 118)
    a("s_mov_b64 exec, s[58:59]")
    a("buffer_store_dwordx4 v[116:119], v120, s[32:35], s54 offen sc1")
    a("s_mov_b64 exec, -1")
    stamp(2)
    a("s_add_u32 s53, s52, 4096")
    a("v_lshlrev_b32 v120, 4, v1")
    if opt.get("h1wait", 1): a("s_waitcnt vmcnt(0)")
    top = lbl("h1"); done = lbl("h1d")
    a(f"{top}:")
    for u in range(8):
        a(f"buffer_load_dwordx4 v[{32+4*u}:{35+4*u}], v120, s[32:35], s{52+(u>>2)} offen offset:{1024*(u&3)} sc1")
    a("s_waitcnt vmcnt(0)")
    check_tags([33 + 2 * i for i in range(16)], 123)
    a(f"s_cbranch_vccz {done}")
    spin_tail(top, 1)
    a(f"{done}:")
    for h in range(2):
        for e in range(2):
            b = 32 + 4 * h + 2 * e
            a(f"v_add_f32 v{b}, v{b}, v{b+8}"); a(f"v_add_f32 v{b+16}, v{b+16}, v{b+24}"); a(f"v_add_f32 v{b}, v{b}, v{b+16}")
    a("v_cvt_pk_bf16_f32 v8, v32, v34"); a("v_cvt_pk_bf16_f32 v9, v36, v38")
    a("v_lshlrev_b32 v120, 2, v1")
    a(f"ds_write_b32 v120, v8 offset:{L_QB}"); a(f"ds_write_b32 v120, v9 offset:{L_QB+256}")
    a("v_mov_b32 v121, 0"); a("v_mov_b32 v122, 1")
    a("s_waitcnt lgkmcnt(0)")
    a(f"ds_write_b32 v121, v122 offset:{L_QF}")
    stamp(3)
    a("s_setprio 0")
    a("s_branch L_W_role2")
    a("L_W_role:")
    a("s_barrier")
    tag_ready()
    a("L_W_role2:")
    a("s_cmp_ge_u32 s50, 13"); a("s_cbranch_scc1 L_plain")
    a("s_cmp_ge_u32 s50, 9"); a("s_cbranch_scc1 L_wo")

    a("s_and_b32 s51, s49, 7"); a("s_mul_i32 s51, s51, 18"); a("s_lshr_b32 s52, s49, 3"); a("s_mul_i32 s52, s52, 9")
    a("s_add_u32 s51, s51, s52"); a("s_add_u32 s51, s51, s50")
    srd(40, 22, 4608 * 1152)
    cls(121)
    a("v_bfe_u32 v122, v1, 2, 1"); a("v_cmp_eq_u32 vcc, 1, v122")
    a("v_mov_b32 v124, s18"); a("v_mov_b32 v125, s19"); a("v_mov_b32 v126, s20"); a("v_mov_b32 v127, s21")
    a("v_cndmask_b32 v124, v124, v126, vcc"); a("v_cndmask_b32 v125, v125, v127, vcc")
    a("s_lshl_b32 s52, s63, 3"); a("v_add_u32 v122, s52, v121"); a("v_mul_u32_u24 v122, 9216, v122")
    a("v_and_b32 v123, 3, v1"); a("v_lshl_add_u32 v122, v123, 4, v122")
    a("s_lshl_b32 s52, s51, 6"); a("v_add_u32 v122, s52, v122"); a("v_mov_b32 v123, 0")
    a("v_lshl_add_u64 v[124:125], v[122:123], 0, v[124:125]")
    a(f"s_mov_b32 s54, {64*9216}"); a("s_mov_b32 s55, 0")
    wgate(opt.get("ffngate", "issued"))
    fd = opt.get("ffndepth", 0)
    for t in range(9):
        throttle(t, fd)
        a(f"global_load_dwordx4 v[{32+4*t}:{35+4*t}], v[124:125], off nt")
        if t < 8: a("v_lshl_add_u64 v[124:125], v[124:125], 0, s[54:55]")
    a(f"v_mul_u32_u24 v122, {4*1152}, v121"); a("v_and_b32 v123, 7, v1"); a("v_lshl_add_u32 v122, v123, 4, v122")
    a(f"s_mul_i32 s52, s51, {32*1152}"); a("s_lshl_b32 s53, s63, 7"); a("s_add_u32 s52, s52, s53")
    for t in range(4): a(f"buffer_load_dwordx4 v[{68+4*t}:{71+4*t}], v122, s[40:43], s52 offen offset:{1152*t} nt")
    a("s_cmp_lg_u32 s63, 7"); a("s_cbranch_scc1 L_ffn_a")
    for t in range(4): a(f"buffer_load_dwordx4 v[{84+4*t}:{87+4*t}], v122, s[40:43], s52 offen offset:{1152*t+128} nt")
    a("L_ffn_a:")
    stamp(4)
    masks()
    a("v_mov_b32 v117, s48"); a("v_mov_b32 v119, s48")
    a("s_lshl_b32 s52, s63, 5"); a("v_lshl_add_u32 v120, v121, 2, s52")
    cp_local(122, 123)
    a("s_lshl_b32 s52, s63, 8"); a("v_lshl_add_u32 v123, v122, 3, s52")
    a(f"v_mul_u32_u24 v122, {H5_STRIDE}, v122")
    a("v_lshlrev_b32 v124, 2, v1")
    a("s_lshl_b32 s52, s63, 7"); a("v_add_u32 v125, s52, v124")
    a("v_lshl_add_u32 v126, v121, 4, s52")
    a(f"s_mul_i32 s52, s63, {32*H5_STRIDE}"); a("s_lshl_b32 s53, s51, 4"); a("s_add_u32 s52, s52, s53"); a(f"s_add_u32 s52, s52, {H5_BASE}")
    a(f"s_add_u32 s53, s52, {32*H5_STRIDE}")
    a("s_waitcnt vmcnt(0)")
    stamp(5)
    a("s_barrier")
    for t in range(0, 8, 2): a(f"ds_read2st64_b32 v[{16+t}:{17+t}], v120 offset0:{t} offset1:{t+1}")
    a(f"ds_read_b32 v24, v120 offset:{8*256}")
    a("s_waitcnt lgkmcnt(0)")
    sel_mfma([16 + t for t in range(9)], [[32 + 4 * t] for t in range(9)], [112], AB=104)
    fold(112, 8, 9)
    a("s_mov_b64 exec, s[58:59]")
    a(f"ds_write_b64 v123, v[8:9] offset:{L_GU}")
    a("s_mov_b64 exec, -1")
    a("s_waitcnt lgkmcnt(0)")
    a("s_barrier")
    assert L_GU % 256 == 0
    for t in range(0, 8, 2): a(f"ds_read2st64_b32 v[{16+t}:{17+t}], v124 offset0:{L_GU//256+t} offset1:{L_GU//256+t+1}")
    a("s_waitcnt lgkmcnt(0)")
    for t in range(0, 8, 2): a(f"v_add_f32 v{16+t}, v{16+t}, v{17+t}")
    a("v_add_f32 v16, v16, v18"); a("v_add_f32 v20, v20, v22"); a("v_add_f32 v16, v16, v20")
    rnd(16)
    a(f"v_mul_f32 v17, {0xbfb8aa3b:#x}, v16"); a("v_exp_f32 v17, v17"); a("v_add_f32 v17, 1.0, v17"); a("v_rcp_f32 v17, v17")
    a("v_mul_f32 v17, v17, v16"); rnd(17)
    a("v_permlane32_swap_b32 v16, v18")
    a("v_mul_f32 v17, v17, v18"); a("v_cvt_pk_bf16_f32 v17, v17, v17")
    a("s_mov_b32 exec_hi, 0")
    a(f"ds_write_b32 v125, v17 offset:{L_ACT}")
    a("s_mov_b64 exec, -1")
    a("s_waitcnt lgkmcnt(0)")
    a(f"ds_read_b128 v[16:19], v126 offset:{L_ACT}")
    a("s_waitcnt lgkmcnt(0)")
    stamp(6)
    a("s_cmp_eq_u32 s63, 7"); a("s_cbranch_scc1 L_ffn_b")
    sel_mfma([16 + t for t in range(4)], [[68 + 4 * t] for t in range(4)], [112], AB=104)
    fold(112, 116, 118)
    a("s_mov_b64 exec, s[58:59]")
    a("buffer_store_dwordx4 v[116:119], v122, s[32:35], s52 offen sc1")
    stamp(7)
    a("s_branch L_exit")
    a("L_ffn_b:")
    a("v_mov_b32 v13, s48"); a("v_mov_b32 v15, s48")
    sel_mfma([16 + t for t in range(4)], [[68 + 4 * t, 84 + 4 * t] for t in range(4)], [112, 8], AB=104)
    fold(112, 116, 118); fold(8, 12, 14)
    a("s_mov_b64 exec, s[58:59]")
    a("buffer_store_dwordx4 v[116:119], v122, s[32:35], s52 offen sc1")
    a("buffer_store_dwordx4 v[12:15], v122, s[32:35], s53 offen sc1")
    stamp(7)
    a("s_branch L_exit")

    a("L_wo:")
    a("s_sub_u32 s51, s50, 9"); a("s_lshl_b32 s52, s49, 2"); a("s_add_u32 s51, s51, s52")
    srd(40, 12, 4096 * 1152)
    cls(121)
    a(f"v_mul_u32_u24 v122, {8*1152}, v121"); a("v_and_b32 v123, 7, v1"); a("v_lshl_add_u32 v122, v123, 4, v122")
    a(f"s_mul_i32 s52, s51, {64*1152}"); a("s_lshl_b32 s53, s63, 7"); a("s_add_u32 s52, s52, s53")
    a(f"s_add_u32 s53, s52, {3*1152}"); a(f"s_add_u32 s54, s52, {6*1152}")
    wgate(opt.get("wogate", "issued"))
    for t in range(8): a(f"buffer_load_dwordx4 v[{32+4*t}:{35+4*t}], v122, s[40:43], s{52+t//3} offen offset:{1152*(t%3)} nt")
    a("s_cmp_lg_u32 s63, 7"); a("s_cbranch_scc1 L_wo_a")
    for t in range(8): a(f"buffer_load_dwordx4 v[{64+4*t}:{67+4*t}], v122, s[40:43], s{52+t//3} offen offset:{1152*(t%3)+128} nt")
    a("L_wo_a:")
    stamp(4)
    masks()
    a("v_mov_b32 v117, s48"); a("v_mov_b32 v119, s48"); a("v_mov_b32 v13, s48"); a("v_mov_b32 v15, s48")
    a("v_lshlrev_b32 v120, 5, v121")
    cp_local(122, 123); a(f"v_mul_u32_u24 v122, {H3_STRIDE}, v122")
    a(f"s_mul_i32 s52, s63, {32*H3_STRIDE}"); a("s_lshl_b32 s53, s51, 4"); a("s_add_u32 s52, s52, s53"); a(f"s_add_u32 s52, s52, {H3_BASE}")
    a(f"s_add_u32 s53, s52, {32*H3_STRIDE}")
    a("s_waitcnt vmcnt(0)")
    stamp(5)
    a("s_barrier")
    a(f"ds_read_b128 v[16:19], v120 offset:{L_VEC}"); a(f"ds_read_b128 v[20:23], v120 offset:{L_VEC+16}")
    a("s_waitcnt lgkmcnt(0)")
    stamp(6)
    a("s_cmp_eq_u32 s63, 7"); a("s_cbranch_scc1 L_wo_b")
    sel_mfma([16 + t for t in range(8)], [[32 + 4 * t] for t in range(8)], [112], AB=104)
    fold(112, 116, 118)
    a("s_mov_b64 exec, s[58:59]")
    a("buffer_store_dwordx4 v[116:119], v122, s[32:35], s52 offen sc1")
    stamp(7)
    a("s_branch L_exit")
    a("L_wo_b:")
    sel_mfma([16 + t for t in range(8)], [[32 + 4 * t, 64 + 4 * t] for t in range(8)], [112, 8], AB=104)
    fold(112, 116, 118); fold(8, 12, 14)
    a("s_mov_b64 exec, s[58:59]")
    a("buffer_store_dwordx4 v[116:119], v122, s[32:35], s52 offen sc1")
    a("buffer_store_dwordx4 v[12:15], v122, s[32:35], s53 offen sc1")
    stamp(7)
    a("s_branch L_exit")

    a("L_plain:")
    a("s_cmp_eq_u32 s63, 0"); a("s_cbranch_scc1 L_exit")
    a("s_mul_i32 s51, s49, 3"); a("s_add_u32 s51, s51, s50"); a("s_sub_u32 s51, s51, 13")
    a("s_cmp_lg_u32 s63, 7"); a("s_cbranch_scc1 L_red")
    a("s_cmp_lg_u32 s51, 0"); a("s_cbranch_scc1 L_exit")
    srd(44, 16, 1152)
    for r in range(80, 86): a(f"v_mov_b32 v{r}, 0")
    a("v_lshlrev_b32 v120, 3, v1")
    a("s_mov_b64 exec, s[56:57]")
    for u in range(3): a(f"buffer_load_dwordx2 v[{80+2*u}:{81+2*u}], v120, s[44:47], 0 offen offset:{384*u}")
    a("s_mov_b64 exec, -1")
    wait_kv_flags(13, 14)
    a("s_branch L_h4poll")
    a("L_red:")
    a("s_mul_i32 s51, s51, 6"); a("s_add_u32 s51, s51, s63"); a("s_sub_u32 s51, s51, 1")
    a("s_lshl_b32 s52, s51, 2")
    a("s_load_dword s62, s[4:5], s52")
    srd(44, 24, 1152)
    a("v_lshlrev_b32 v23, 4, v1")
    a(f"s_mul_i32 s53, s51, {H3_STRIDE}"); a(f"s_add_u32 s53, s53, {H3_BASE}")
    a(f"s_mul_i32 s54, s51, {H5_STRIDE}"); a(f"s_add_u32 s54, s54, {H5_BASE}")
    a("s_lshl_b32 s55, s51, 3"); a(f"s_add_u32 s55, s55, {H4_BASE}")
    a(f"v_mul_u32_u24 v24, {H4_STRIDE}, v1")
    a("v_mov_b32 v27, s48")
    a("v_mov_b32 v40, 0"); a("v_mov_b32 v41, s48"); a("v_mov_b32 v42, 0"); a("v_mov_b32 v43, s48")
    a("v_cmp_gt_u32 s[30:31], 32, v1")
    a("v_lshrrev_b32 v25, 5, v1"); a("v_lshlrev_b32 v25, 1, v25")
    a("s_waitcnt lgkmcnt(0)")
    a("s_lshl_b32 s61, s62, 16"); a("s_and_b32 s62, s62, 0xffff0000")
    a("v_mov_b32 v20, s62"); a("v_mov_b32 v21, s61"); a("v_cndmask_b32 v20, v20, v21, s[30:31]")
    wait_kv_flags(13, 14)
    a("s_setprio 3")
    stamp(4)
    top = lbl("h3"); done = lbl("h3d")
    a(f"{top}:")
    a("buffer_load_dwordx4 v[32:35], v23, s[32:35], s53 offen sc1")
    a("s_waitcnt vmcnt(0)")
    check_tags([33, 35], 13)
    a(f"s_cbranch_vccz {done}")
    spin_tail(top, opt.get("h3sleep", None))
    a(f"{done}:")
    stamp(5)
    def half_sum(x, y, t):
        a(f"v_permlane32_swap_b32 v{x}, v{y}"); a(f"v_add_f32 v{x}, v{x}, v{y}")
        for r in (8, 4, 2, 1): a(f"v_add_f32_dpp v{x}, v{x}, v{x} row_ror:{r} row_mask:0xf bank_mask:0xf")
        a(f"v_mov_b32 v{t}, v{x}"); a(f"v_permlane16_swap_b32 v{x}, v{t}"); a(f"v_add_f32 v{x}, v{x}, v{t}")
    half_sum(32, 34, 13)
    rnd(32)
    a("v_add_f32 v20, v20, v32"); rnd(20)
    a("v_readlane_b32 s61, v20, 32")
    a("v_lshrrev_b32 v26, 16, v20"); a("v_or_b32 v26, s61, v26")
    a(f"s_mov_b64 exec, {(1<<H4_REPS)-1:#x}")
    a("buffer_store_dwordx2 v[26:27], v24, s[32:35], s55 offen sc1")
    a("s_mov_b64 exec, -1")
    stamp(6)
    top = lbl("h5"); done = lbl("h5d")
    a(f"{top}:")
    a("buffer_load_dwordx4 v[32:35], v23, s[32:35], s54 offen sc1")
    a("buffer_load_dwordx4 v[36:39], v23, s[32:35], s54 offen offset:1024 sc1")
    a("s_mov_b64 exec, 0x1ffff")
    a("buffer_load_dwordx4 v[40:43], v23, s[32:35], s54 offen offset:2048 sc1")
    a("s_mov_b64 exec, -1")
    a("s_waitcnt vmcnt(0)")
    check_tags([33, 35, 37, 39, 41, 43], 13)
    a(f"s_cbranch_vccz {done}")
    spin_tail(top, opt.get("h5sleep", None))
    a(f"{done}:")
    a("v_readlane_b32 s61, v40, 16"); a("v_readlane_b32 s62, v42, 16")
    a("v_add_f32 v32, v32, v36"); a("v_add_f32 v34, v34, v38")
    a("s_mov_b64 exec, 0xffff")
    a("v_add_f32 v32, v32, v40"); a("v_add_f32 v34, v34, v42")
    a("s_mov_b64 exec, -1")
    a("s_lshl_b32 s53, s61, 16"); a("s_and_b32 s61, s61, 0xffff0000")
    a("v_mov_b32 v21, s61"); a("v_mov_b32 v22, s53"); a("v_cndmask_b32 v21, v21, v22, s[30:31]")
    half_sum(32, 34, 13)
    rnd(32)
    a("v_mul_f32 v32, s62, v32"); rnd(32)
    a("v_add_f32 v32, v21, v32"); rnd(32)
    a("v_add_f32 v32, v20, v32"); a("v_cvt_pk_bf16_f32 v32, v32, v32")
    a("s_mov_b32 exec_lo, 1"); a("s_mov_b32 exec_hi, 1")
    a("buffer_store_short v32, v25, s[44:47], s52 offen")
    a("s_cmp_lg_u32 s51, 0"); a("s_cbranch_scc1 L_red_end")
    a("s_mov_b64 exec, 1")
    a("buffer_store_dword v27, v25, s[32:35], 0 offen sc1")
    a("L_red_end:")
    stamp(7)
    a("L_exit:")
    if diag:
        a("s_mov_b64 exec, 1")
        a("s_waitcnt lgkmcnt(0)")
        for i in range(8): a(f"v_mov_b32 v{8+i}, s{64+2*i}")
        a("s_lshl_b32 s61, s2, 9"); a("s_lshl_b32 s62, s3, 5"); a("s_add_u32 s61, s61, s62"); a(f"s_add_u32 s61, s61, {STAMP_BASE}")
        a("v_mov_b32 v1, 0")
        a("buffer_store_dwordx4 v[8:11], v1, s[32:35], s61 offen")
        a("buffer_store_dwordx4 v[12:15], v1, s[32:35], s61 offen offset:16")
    a("L_end:")
    a("s_endpgm")
    a.raw('.section .rodata,"a"'); a.raw(".p2align 6")
    a.raw(f".amdhsa_kernel {NAME}_kernel")
    a.raw("  .amdhsa_next_free_vgpr 128"); a.raw("  .amdhsa_next_free_sgpr 96"); a.raw("  .amdhsa_accum_offset 128")
    a.raw("  .amdhsa_group_segment_fixed_size 0"); a.raw("  .amdhsa_kernarg_size 104")
    a.raw("  .amdhsa_user_sgpr_count 2"); a.raw("  .amdhsa_user_sgpr_kernarg_segment_ptr 1"); a.raw("  .amdhsa_system_sgpr_workgroup_id_x 1")
    a.raw("  .amdhsa_float_denorm_mode_32 3")
    a.raw(".end_amdhsa_kernel")
    return a.text()

if __name__ == "__main__":
    diag = "--diag" in sys.argv
    out = [x for x in sys.argv[1:] if not x.startswith("--")][0]
    open(out, "w").write(gen(diag=diag))

def report(show, w, j, rel):
    allw = w >= 0
    show("KV all", allw, list(range(8)))
    show("KV0 ffn(h4)", j < 9, [0])
    show("KV0 wo(h2)", (j >= 9) & (j < 13), [0])
    show("Q wave", allw, [8])
    show("W ffn", j < 9, list(range(8, 16)))
    show("W wo", (j >= 9) & (j < 13), list(range(8, 16)))
    show("reducers", j >= 13, list(range(9, 15)))
    show("stats", w == 13 * 8, [15])
```

```python
import sys
from asmlib import Asm
NAME = "sequential_preLN__sliding_block_cached__moe_arch_mod__decode"

H1_BASE = 0x1000
H2_BASE = 0x21000; H2_STRIDE = 8576
H3_BASE = 0xA7000; H3_STRIDE = 1152
H4_BASE = 0xF8000; H4_STRIDE = 2432; H4_REPS = 8
H5_BASE = 0xFD000; H5_STRIDE = 2432
WS_USED = 0x1A8000
STAMP_BASE = 0x400000
L_VEC = 0x0000
L_QB = 0x0900
L_KVF = 0x0B00
L_KIF = 0x0B20
L_QF = 0x0B40
L_PUB = 0x0B44
L_ML = 0x0B80
L_OP = 0x0C00
L_GU = 0x2C00
L_ACT = 0x3400
LDS_BYTES = 0x3800
LOG2E = 0x3fb8aa3b
SCALE = 0x3db504f3
INV576 = 0x3ae38e39
EPS = 0x3727c5ac
SPIN = 1 << 18

HEADER = open("cdna_kernels/" + NAME + ".s.ref").read().split("; Override launch")[0]

def gen(diag=False, opt=None):
    opt = opt or {}
    a = Asm()
    nst = [0]
    def stamp(i):
        if diag: a(f"s_memrealtime s[{64+2*i}:{65+2*i}]")
    uid = [0]
    def lbl(p):
        uid[0] += 1; return f"L_{p}_{uid[0]}"

    def wave_sum(x, t, op="add"):
        for r in (8, 4, 2, 1):
            a(f"v_{op}_f32_dpp v{x}, v{x}, v{x} row_ror:{r} row_mask:0xf bank_mask:0xf")
        a(f"v_mov_b32 v{t}, v{x}"); a(f"v_permlane16_swap_b32 v{x}, v{t}"); a(f"v_{op}_f32 v{x}, v{x}, v{t}")
        a(f"v_mov_b32 v{t}, v{x}"); a(f"v_permlane32_swap_b32 v{x}, v{t}"); a(f"v_{op}_f32 v{x}, v{x}, v{t}")
    def rnd(x):
        a(f"v_cvt_pk_bf16_f32 v{x}, v{x}, v{x}"); a(f"v_and_b32 v{x}, 0xffff0000, v{x}")
    def masks():
        a("v_and_b32 v8, 1, v1"); a("v_lshlrev_b32 v8, 4, v8"); a("v_mov_b32 v9, 0xffff"); a("v_lshlrev_b32 v8, v8, v9")
        a("v_bfe_u32 v9, v1, 1, 2")
        for d in range(4):
            a(f"v_cmp_eq_u32 vcc, {d}, v9"); a(f"v_cndmask_b32 v{4+d}, 0, v8, vcc")
    def tag_ready():
        a("s_waitcnt lgkmcnt(0)")
        a("s_mul_i32 s48, s48, 1664525"); a("s_add_u32 s48, s48, 1013904223")
    def spin_tail(top, sleep=None):
        if sleep is not None: a(f"s_sleep {sleep}")
        a("s_sub_u32 s60, s60, 1"); a("s_cmp_lg_u32 s60, 0"); a(f"s_cbranch_scc1 {top}"); a("s_branch L_exit")
    def check_tags(regs, acc):
        a(f"v_xor_b32 v{acc}, s48, v{regs[0]}")
        for r in regs[1:]: a(f"v_bitop3_b32 v{acc}, v{acc}, v{r}, s48 bitop3:0xf6")
        a(f"v_cmp_ne_u32 vcc, 0, v{acc}")
    def wait_kv_flags(tmp_addr, tmp, off=L_KVF, n=8):
        top = lbl("kvf"); done = lbl("kvfd")
        a(f"v_and_b32 v{tmp_addr}, {n-1}, v1"); a(f"v_lshlrev_b32 v{tmp_addr}, 2, v{tmp_addr}")
        a(f"{top}:")
        a(f"ds_read_b32 v{tmp}, v{tmp_addr} offset:{off}"); a("s_waitcnt lgkmcnt(0)")
        a(f"v_cmp_eq_u32 vcc, 0, v{tmp}"); a(f"s_cbranch_vccz {done}")
        spin_tail(top, 2)
        a(f"{done}:")
    def wgate(mode):
        if mode == "issued": wait_kv_flags(10, 11, L_KIF)
        elif mode == "done": wait_kv_flags(10, 11, L_KVF)
        elif mode == "pub": wait_kv_flags(10, 11, L_PUB, 1)
    def throttle(i, depth):
        if depth and i >= depth: a(f"s_waitcnt vmcnt({depth-1})")
    def layernorm(P, F, T):
        for i in range(6):
            a(f"v_lshlrev_b32 v{F+2*i}, 16, v{P[i]}"); a(f"v_and_b32 v{F+2*i+1}, 0xffff0000, v{P[i]}")
        S = T; U = T + 1; M = T + 2; Q = T + 3; D = T + 4
        for i in range(6): a(f"v_add_f32 v{D+i}, v{F+2*i}, v{F+2*i+1}")
        a(f"v_add_f32 v{D}, v{D}, v{D+1}"); a(f"v_add_f32 v{D+2}, v{D+2}, v{D+3}"); a(f"v_add_f32 v{D+4}, v{D+4}, v{D+5}")
        a(f"v_add_f32 v{S}, v{D}, v{D+2}"); a(f"v_add_f32 v{S}, v{S}, v{D+4}")
        a(f"v_mov_b32 v{Q}, 0")
        wave_sum(S, U)
        a(f"v_mul_f32 v{S}, {INV576:#x}, v{S}")
        a("s_mov_b64 exec, s[56:57]")
        for i in range(12): a(f"v_sub_f32 v{D+i}, v{F+i}, v{S}")
        for i in range(12): a(f"v_fmac_f32 v{Q}, v{D+i}, v{D+i}")
        a("s_mov_b64 exec, -1")
        a(f"v_mov_b32 v{M}, v{S}"); rnd(M)
        wave_sum(Q, U)
        for i in range(12): a(f"v_sub_f32 v{F+i}, v{F+i}, v{M}")
        a(f"v_mul_f32 v{Q}, {INV576:#x}, v{Q}"); rnd(Q)
        a(f"v_add_f32 v{Q}, {EPS:#x}, v{Q}"); rnd(Q)
        a(f"v_sqrt_f32 v{Q}, v{Q}"); rnd(Q)
        a(f"v_rcp_f32 v{Q}, v{Q}")
        for i in range(6): a(f"v_cvt_pk_bf16_f32 v{D+i}, v{F+2*i}, v{F+2*i+1}")
        for i in range(6):
            a(f"v_lshlrev_b32 v{F+2*i}, 16, v{D+i}"); a(f"v_and_b32 v{F+2*i+1}, 0xffff0000, v{D+i}")
        for i in range(12): a(f"v_mul_f32 v{F+i}, v{F+i}, v{Q}")
        for i in range(12): a(f"v_cvt_pk_bf16_f32 v{F+i}, v{F+i}, v{F+i}")
    def vec_write(F, addr):
        a(f"v_lshlrev_b32 v{addr}, 4, v1")
        a("s_mov_b64 exec, s[56:57]")
        for u in range(3): a(f"ds_write_b128 v{addr}, v[{F+4*u}:{F+4*u+3}] offset:{L_VEC+768*u}")
        a("s_mov_b64 exec, -1")
    def sel_mfma(vals, wregs, accs, AB=104, waits=None):
        n = len(vals)
        def ands(t):
            b = AB + 4 * (t & 1)
            for d in range(4): a(f"v_and_b32 v{b+d}, v{vals[t]}, v{4+d}")
        ands(0)
        for t in range(n):
            if t + 1 < n: ands(t + 1)
            if waits and waits[t] is not None: a(waits[t])
            b = AB + 4 * (t & 1)
            for w, c in zip(wregs[t], accs):
                cs = "0" if t == 0 else f"v[{c}:{c+3}]"
                a(f"v_mfma_f32_16x16x32_bf16 v[{c}:{c+3}], v[{b}:{b+3}], v[{w}:{w+3}], {cs}")
    def fold(c, d0, d1):
        a(f"v_permlane32_swap_b32 v{c}, v{c+2}"); a(f"v_permlane32_swap_b32 v{c+1}, v{c+3}")
        a(f"v_add_f32_dpp v{d0}, v{c+2}, v{c} row_ror:8 row_mask:0xf bank_mask:0xf")
        a(f"v_add_f32_dpp v{d1}, v{c+3}, v{c+1} row_ror:8 row_mask:0xf bank_mask:0xf")
    def cp_local(dst, t):
        a(f"v_and_b32 v{dst}, 7, v1"); a(f"v_lshlrev_b32 v{dst}, 2, v{dst}")
        a(f"v_bfe_u32 v{t}, v1, 4, 1"); a(f"v_lshl_add_u32 v{dst}, v{t}, 1, v{dst}")
        a(f"v_lshrrev_b32 v{t}, 5, v1"); a(f"v_add_u32 v{dst}, v{dst}, v{t}")
    def cls(dst):
        a(f"v_bfe_u32 v{dst}, v1, 3, 1"); a(f"v_lshl_add_u32 v{dst}, v{dst}, 2, v3")
    def srd(base, ptr, size):
        a(f"s_mov_b32 s{base}, s{ptr}"); a(f"s_mov_b32 s{base+1}, s{ptr+1}"); a(f"s_mov_b32 s{base+2}, {size:#x}"); a(f"s_mov_b32 s{base+3}, 0x20000")

    a.raw(HEADER.rstrip())
    a.raw(f"; @launch grid=(256,1,1) block=(1024,1,1) lds={LDS_BYTES}")
    a.raw('.amdgcn_target "amdgcn-amd-amdhsa--gfx950"')
    a.raw(".text"); a.raw(f".globl {NAME}_kernel"); a.raw(".p2align 8"); a.raw(f".type {NAME}_kernel,@function")
    a.raw(f"{NAME}_kernel:")
    if diag:
        for i in range(1, 8): a(f"s_mov_b64 s[{64+2*i}:{65+2*i}], 0")
    stamp(0)
    a("s_cmp_ge_u32 s2, 256"); a("s_cbranch_scc1 L_end")
    a("s_load_dwordx16 s[4:19], s[0:1], 0")
    a("s_load_dwordx8 s[20:27], s[0:1], 64")
    a("s_load_dwordx2 s[28:29], s[0:1], 96")
    a("v_lshrrev_b32 v2, 6, v0")
    a("v_and_b32 v1, 63, v0")
    a("v_readfirstlane_b32 s3, v2")
    a("v_lshlrev_b32 v4, 2, v1"); a("v_mov_b32 v5, 0")
    a("s_mov_b32 exec_hi, 0"); a(f"ds_write_b32 v4, v5 offset:{L_KVF}"); a("s_mov_b64 exec, -1")
    a("v_and_b32 v2, 15, v1"); a("v_lshrrev_b32 v3, 4, v1")
    a("s_and_b32 s49, s2, 7"); a("s_lshr_b32 s51, s2, 7"); a("s_lshl_b32 s51, s51, 3"); a("s_add_u32 s49, s49, s51")
    a("s_lshr_b32 s50, s2, 3"); a("s_and_b32 s50, s50, 15")
    a(f"s_mov_b32 s60, {SPIN}")
    a("s_mov_b32 s56, -1"); a("s_mov_b32 s57, 0xffff")
    a("s_mov_b32 s58, 0x00ff00ff"); a("s_mov_b32 s59, 0x00ff00ff")
    a("s_waitcnt lgkmcnt(0)")
    a("s_load_dword s48, s[28:29], 0")
    srd(32, 28, WS_USED if not diag else 0x800000)
    a("s_cmp_ge_u32 s3, 8"); a("s_cbranch_scc1 L_W")

    a("s_setprio 2")
    srd(36, 6, 0x10000000); srd(40, 8, 0x10000000)
    a("s_lshl_b32 s51, s49, 24"); a("s_lshl_b32 s52, s50, 16"); a("s_add_u32 s51, s51, s52")
    a("s_lshl_b32 s52, s3, 13"); a("s_add_u32 s51, s51, s52"); a("s_add_u32 s51, s51, 0xF00000")
    a("s_add_u32 s52, s51, 4096")
    a("v_lshlrev_b32 v96, 8, v2"); a("v_lshl_add_u32 v96, v3, 4, v96")
    a("v_lshlrev_b32 v97, 10, v3"); a("v_lshl_add_u32 v97, v2, 4, v97")
    a("s_barrier")
    kd = opt.get("kvdepth", 4)
    for T in range(2):
        for s in range(4):
            r = 32 + 16 * T + 4 * s
            throttle(4 * T + s, kd)
            a(f"buffer_load_dwordx4 v[{r}:{r+3}], v96, s[36:39], s{51+T} offen offset:{64*s} nt")
    for T in range(2):
        for rr in range(4):
            r = 64 + 16 * T + 4 * rr
            throttle(8 + 4 * T + rr, kd)
            a(f"buffer_load_dwordx4 v[{r}:{r+3}], v97, s[40:43], s{51+T} offen offset:{256*rr} nt")
    a("s_lshl_b32 s61, s3, 2"); a("v_mov_b32 v116, s61"); a("v_mov_b32 v117, 1")
    a(f"ds_write_b32 v116, v117 offset:{L_KIF}")
    stamp(1)
    masks()
    tag_ready()
    for r in (101, 103, 105, 107, 109, 111): a(f"v_mov_b32 v{r}, s48")
    a("v_lshrrev_b32 v112, 5, v1"); a("v_bfe_u32 v113, v1, 3, 1"); a("v_lshl_add_u32 v112, v112, 1, v113")
    a(f"v_mul_u32_u24 v114, {H2_STRIDE}, v112")
    a("v_and_b32 v112, 7, v1"); a("v_lshlrev_b32 v112, 6, v112"); a("v_bfe_u32 v113, v1, 4, 1"); a("v_lshl_add_u32 v112, v113, 5, v112")
    a("v_add_u32 v112, v112, v114")
    a(f"s_mul_i32 s53, s49, {4*H2_STRIDE}"); a(f"s_add_u32 s53, s53, {H2_BASE}")
    a("s_lshl_b32 s54, s50, 9"); a("s_add_u32 s54, s54, s53")
    a("s_lshl_b32 s55, s50, 4"); a("s_add_u32 s55, s55, s53"); a("s_add_u32 s55, s55, 8192")
    a("v_bfe_u32 v98, v1, 3, 1"); a("v_lshlrev_b32 v98, 8, v98"); a("v_lshl_add_u32 v98, v3, 4, v98")
    a("v_mov_b32 v99, 0")
    top = lbl("qf"); done = lbl("qfd")
    a(f"{top}:")
    a(f"ds_read_b32 v115, v99 offset:{L_QF}"); a("s_waitcnt lgkmcnt(0)")
    a("v_cmp_ne_u32 vcc, 0, v115"); a(f"s_cbranch_vccnz {done}")
    spin_tail(top, 2)
    a(f"{done}:")
    for s in range(4): a(f"ds_read_b128 v[{16+4*s}:{19+4*s}], v98 offset:{L_QB+64*s}")
    a("s_waitcnt lgkmcnt(0)")
    stamp(2)
    for T in range(2):
        a(f"s_waitcnt vmcnt({12-4*T})")
        for s in range(4):
            r = 32 + 16 * T + 4 * s; c = 8 + 4 * T
            cs = "0" if s == 0 else f"v[{c}:{c+3}]"
            a(f"v_mfma_f32_16x16x32_bf16 v[{c}:{c+3}], v[{r}:{r+3}], v[{16+4*s}:{19+4*s}], {cs}")
    for i in range(4): a(f"v_cvt_pk_bf16_f32 v{16+i}, v{8+2*i}, v{9+2*i}")
    for i in range(4): a(f"v_lshlrev_b32 v{8+2*i}, 16, v{16+i}"); a(f"v_and_b32 v{9+2*i}, 0xffff0000, v{16+i}")
    for i in range(8): a(f"v_mul_f32 v{8+i}, {SCALE:#x}, v{8+i}")
    for i in range(4): a(f"v_cvt_pk_bf16_f32 v{16+i}, v{8+2*i}, v{9+2*i}")
    for i in range(4): a(f"v_lshlrev_b32 v{8+2*i}, 16, v{16+i}"); a(f"v_and_b32 v{9+2*i}, 0xffff0000, v{16+i}")
    a("v_max3_f32 v20, v8, v9, v10"); a("v_max3_f32 v21, v11, v12, v13"); a("v_max3_f32 v20, v20, v14, v15"); a("v_max_f32 v20, v20, v21")
    a("v_mov_b32 v21, v20"); a("v_permlane16_swap_b32 v20, v21"); a("v_max_f32 v20, v20, v21")
    a("v_mov_b32 v21, v20"); a("v_permlane32_swap_b32 v20, v21"); a("v_max_f32 v20, v20, v21")
    a(f"s_mov_b32 s61, {LOG2E:#x}")
    a("v_mul_f32 v20, s61, v20")
    for i in range(8): a(f"v_fma_f32 v{8+i}, v{8+i}, s61, -v20")
    for i in range(8): a(f"v_exp_f32 v{8+i}, v{8+i}")
    for i in range(8): a(f"v_cvt_pk_bf16_f32 v{24+i}, v{8+i}, v{8+i}")
    a("v_add_f32 v21, v8, v9"); a("v_add_f32 v22, v10, v11"); a("v_add_f32 v23, v12, v13"); a("v_add_f32 v8, v14, v15")
    a("v_add_f32 v21, v21, v22"); a("v_add_f32 v23, v23, v8"); a("v_add_f32 v21, v21, v23")
    a("v_mov_b32 v22, v21"); a("v_permlane16_swap_b32 v21, v22"); a("v_add_f32 v21, v21, v22")
    a("v_mov_b32 v22, v21"); a("v_permlane32_swap_b32 v21, v22"); a("v_add_f32 v21, v21, v22")
    a("v_bfe_u32 v22, v1, 3, 1"); a("v_lshlrev_b32 v22, 6, v22"); a("s_lshl_b32 s61, s3, 3"); a("v_add_u32 v22, s61, v22")
    a("s_mov_b64 exec, 0x101"); a(f"ds_write_b64 v22, v[20:21] offset:{L_ML}"); a("s_mov_b64 exec, -1")
    a("s_lshl_b32 s61, s3, 10"); a("v_lshlrev_b32 v23, 4, v1"); a("v_add_u32 v22, s61, v23")
    stamp(3)
    sel_mfma([24 + i for i in range(8)], [[64 + 4 * i] for i in range(8)], [8], AB=32, waits=[f"s_waitcnt vmcnt({7-i})" for i in range(8)])
    a(f"ds_write_b128 v22, v[8:11] offset:{L_OP}")
    a("v_and_b32 v13, 7, v1"); a("v_lshlrev_b32 v13, 2, v13")
    a("s_waitcnt lgkmcnt(0)")
    a(f"ds_write_b32 v116, v117 offset:{L_KVF}")
    a(f"ds_read_b32 v14, v13 offset:{L_KVF}")
    a("v_lshrrev_b32 v15, 5, v1"); a("v_lshlrev_b32 v15, 6, v15"); a("v_lshl_add_u32 v15, v13, 1, v15")
    a("s_waitcnt lgkmcnt(0)")
    stamp(4)
    a("v_cmp_eq_u32 vcc, 0, v14"); a("s_cbranch_vccnz L_kv_after")
    a(f"ds_read_b64 v[16:17], v15 offset:{L_ML}")
    for k in range(8): a(f"ds_read_b128 v[{32+4*k}:{35+4*k}], v23 offset:{L_OP+1024*k}")
    a("s_waitcnt lgkmcnt(8)" if not diag else "s_waitcnt lgkmcnt(0)")
    a("v_max_f32_dpp v108, v16, v16 row_ror:4 row_mask:0xf bank_mask:0xf")
    a("v_max_f32_dpp v108, v108, v108 row_ror:2 row_mask:0xf bank_mask:0xf")
    a("v_max_f32_dpp v108, v108, v108 row_ror:1 row_mask:0xf bank_mask:0xf")
    a("v_sub_f32 v16, v16, v108"); a("v_exp_f32 v16, v16")
    a("v_mul_f32 v110, v16, v17")
    a("s_waitcnt lgkmcnt(0)")
    for k in range(8):
        for r in range(4):
            op = "v_mul_f32_dpp" if k == 0 else "v_fmac_f32_dpp"
            a(f"{op} v{100+2*r}, v16, v{32+4*k+r} row_newbcast:{k} row_mask:0xf bank_mask:0xf")
        if k in (0, 1, 2):
            a(f"v_add_f32_dpp v110, v110, v110 row_ror:{4>>k} row_mask:0xf bank_mask:0xf")
    if not opt.get("nopub"):
        a("buffer_store_dwordx4 v[100:103], v112, s[32:35], s54 offen sc1")
        a("buffer_store_dwordx4 v[104:107], v112, s[32:35], s54 offen offset:16 sc1")
    a("s_mov_b32 exec_lo, 0x101"); a("s_mov_b32 exec_hi, 0x101")
    a("buffer_store_dwordx4 v[108:111], v114, s[32:35], s55 offen sc1")
    a("s_mov_b64 exec, -1")
    a(f"ds_write_b32 v99, v117 offset:{L_PUB}")
    stamp(5)
    a("L_kv_after:")
    a("s_cmp_lg_u32 s3, 0"); a("s_cbranch_scc1 L_exit")
    a("s_cmp_ge_u32 s50, 13"); a("s_cbranch_scc1 L_exit")
    if opt.get("nopoll"): a("s_branch L_exit")
    a("s_setprio 3")
    wait_kv_flags(13, 14)
    a("s_cmp_lt_u32 s50, 9"); a("s_cbranch_scc1 L_h4poll")
    a("s_sub_u32 s61, s50, 9"); a(f"s_mul_i32 s61, s61, {H2_STRIDE}"); a("s_add_u32 s53, s53, s61")
    a("s_add_u32 s54, s53, 4096"); a("s_add_u32 s55, s53, 8192")
    a("v_lshrrev_b32 v12, 5, v1"); a("v_xor_b32 v12, v12, v2"); a("v_lshlrev_b32 v12, 4, v12")
    top = lbl("h2"); done = lbl("h2d")
    a(f"{top}:")
    a("buffer_load_dwordx4 v[64:67], v12, s[32:35], s55 offen sc1")
    for u in range(8):
        a(f"buffer_load_dwordx4 v[{32+4*u}:{35+4*u}], v23, s[32:35], s{53+(u>>2)} offen offset:{1024*(u&3)} sc1")
    a("s_waitcnt vmcnt(0)")
    check_tags([65, 67] + [33 + 2 * i for i in range(16)], 13)
    a(f"s_cbranch_vccz {done}")
    spin_tail(top, opt.get("h2sleep", None))
    a(f"{done}:")
    stamp(6)
    a("v_max_f32_dpp v16, v64, v64 row_ror:8 row_mask:0xf bank_mask:0xf")
    for r in (4, 2, 1): a(f"v_max_f32_dpp v16, v16, v16 row_ror:{r} row_mask:0xf bank_mask:0xf")
    a("v_sub_f32 v16, v64, v16"); a("v_exp_f32 v16, v16")
    a("v_mul_f32 v17, v16, v66")
    for u in range(8):
        for e in range(2):
            op = "v_mul_f32_dpp" if u == 0 else "v_fmac_f32_dpp"
            a(f"{op} v{18+e}, v16, v{32+4*u+2*e} row_newbcast:{2*u} row_mask:0xf bank_mask:0xf")
        if u < 4: a(f"v_add_f32_dpp v17, v17, v17 row_ror:{8>>u} row_mask:0xf bank_mask:0xf")
    a("v_rcp_f32 v17, v17")
    a("v_permlane32_swap_b32 v18, v19")
    a("v_add_f32 v18, v18, v19")
    a("v_mul_f32 v18, v18, v17")
    a("v_cvt_pk_bf16_f32 v18, v18, v18")
    a("v_and_b32 v19, 31, v1"); a("v_lshlrev_b32 v19, 3, v19"); a("v_lshrrev_b32 v20, 5, v1"); a("v_lshl_add_u32 v19, v20, 2, v19")
    a(f"ds_write_b32 v19, v18 offset:{L_VEC}")
    a("s_waitcnt lgkmcnt(0)")
    a("s_barrier")
    stamp(7)
    a("s_branch L_exit")

    a("L_h4poll:")
    a("s_and_b32 s61, s2, 7"); a(f"s_mul_i32 s61, s61, {H4_STRIDE}"); a(f"s_add_u32 s53, s61, {H4_BASE}")
    a("v_lshlrev_b32 v23, 4, v1")
    for r in range(32, 44, 2): a(f"v_mov_b32 v{r}, 0"); a(f"v_mov_b32 v{r+1}, s48")
    top = lbl("h4"); done = lbl("h4d")
    a(f"{top}:")
    a("s_mov_b64 exec, s[56:57]")
    for u in range(3): a(f"buffer_load_dwordx4 v[{32+4*u}:{35+4*u}], v23, s[32:35], s53 offen offset:{768*u} sc1")
    a("s_mov_b64 exec, -1")
    a("s_waitcnt vmcnt(0)")
    check_tags([33 + 2 * i for i in range(6)], 13)
    a(f"s_cbranch_vccz {done}")
    spin_tail(top, opt.get("h4sleep", 1))
    a(f"{done}:")
    stamp(6)
    layernorm([32 + 2 * i for i in range(6)], 44, 56)
    a("s_cmp_ge_u32 s3, 8"); a("s_cbranch_scc1 L_stats")
    vec_write(44, 12)
    a("s_waitcnt lgkmcnt(0)")
    a("s_barrier")
    stamp(7)
    a("s_branch L_exit")
    a("L_stats:")
    a("v_mov_b32 v56, 0")
    for i in range(6):
        a(f"v_and_b32 v57, 0xffff0000, v{44+2*i}"); a(f"v_lshlrev_b32 v58, 16, v{80+i}"); a("v_fmac_f32 v56, v57, v58")
        a(f"v_and_b32 v57, 0xffff0000, v{45+2*i}"); a(f"v_and_b32 v58, 0xffff0000, v{80+i}"); a("v_fmac_f32 v56, v57, v58")
    wave_sum(56, 57)
    rnd(56)
    a(f"v_mul_f32 v56, {0xbfb8aa3b:#x}, v56"); a("v_exp_f32 v56, v56"); a("v_add_f32 v56, 1.0, v56"); a("v_rcp_f32 v56, v56")
    rnd(56)
    a(f"v_mul_u32_u24 v57, {2*H5_STRIDE}, v1")
    a("s_mov_b32 s61, 0xffff")
    a("s_mov_b64 exec, s[56:57]")
    for u in range(3):
        for e in range(2):
            b = 88 + 4 * ((2 * u + e) & 1)
            a(f"v_bfi_b32 v{b}, s61, v{44+4*u+2*e}, v{45+4*u+2*e}")
            a(f"v_mov_b32 v{b+1}, s48"); a(f"v_mov_b32 v{b+2}, v56"); a(f"v_mov_b32 v{b+3}, s48")
            a(f"s_mov_b32 s62, {H5_BASE + 144*16 + (96*u+e)*H5_STRIDE}")
            a(f"buffer_store_dwordx4 v[{b}:{b+3}], v57, s[32:35], s62 offen sc1")
    a("s_mov_b64 exec, -1")
    stamp(7)
    a("s_branch L_exit")

    a("L_W:")
    a("s_sub_u32 s63, s3, 8")
    a("s_cmp_lg_u32 s63, 0"); a("s_cbranch_scc1 L_W_role")
    a("s_setprio 3")
    srd(44, 4, 1152); srd(36, 10, 576 * 8192)
    for r in range(8, 14): a(f"v_mov_b32 v{r}, 0")
    a("v_lshlrev_b32 v120, 3, v1")
    a("s_mov_b64 exec, s[56:57]")
    for u in range(3): a(f"buffer_load_dwordx2 v[{8+2*u}:{9+2*u}], v120, s[44:47], 0 offen offset:{384*u}")
    a("s_mov_b64 exec, -1")
    cls(121)
    a("v_and_b32 v122, 7, v1"); a("v_lshlrev_b32 v122, 4, v122"); a("v_lshl_add_u32 v122, v121, 13, v122")
    a("s_lshr_b32 s51, s50, 2"); a("s_lshl_b32 s52, s51, 17"); a("s_lshl_b32 s53, s49, 9"); a("s_add_u32 s52, s52, s53")
    a("s_and_b32 s53, s50, 3"); a("s_lshl_b32 s54, s53, 7"); a("s_add_u32 s52, s52, s54")
    for t in range(9):
        a(f"buffer_load_dwordx4 v[{32+8*t}:{35+8*t}], v122, s[36:39], s52 offen nt")
        a("s_add_u32 s54, s52, 65536")
        a(f"buffer_load_dwordx4 v[{36+8*t}:{39+8*t}], v122, s[36:39], s54 offen nt")
        if t < 8: a("s_add_u32 s52, s52, 524288")
    a("s_barrier")
    stamp(1)
    a("s_waitcnt vmcnt(18)")
    layernorm([8 + i for i in range(6)], 16, 104)
    vec_write(16, 120)
    masks()
    a("s_lshl_b32 s54, s51, 6"); a("v_lshl_add_u32 v120, v121, 2, s54"); a("v_add_u32 v123, 32, v120")
    a("s_waitcnt lgkmcnt(0)")
    for kk, ad in ((0, 120), (1, 123)):
        b = 8 + 10 * kk
        for t in range(0, 8, 2): a(f"ds_read2st64_b32 v[{b+t}:{b+t+1}], v{ad} offset0:{t} offset1:{t+1}")
        a(f"ds_read_b32 v{b+8}, v{ad} offset:{8*256}")
    tag_ready()
    vals = []; wr = []; waits = []
    for t in range(9):
        for kk in range(2):
            vals.append(8 + 10 * kk + t); wr.append([32 + 8 * t + 4 * kk]); waits.append(f"s_waitcnt vmcnt({17-2*t-kk})")
    sel_mfma(vals, wr, [112], AB=104, waits=waits)
    a("v_mov_b32 v117, s48"); a("v_mov_b32 v119, s48")
    cp_local(120, 123); a("v_lshlrev_b32 v120, 4, v120")
    a("s_lshl_b32 s52, s49, 13"); a(f"s_add_u32 s52, s52, {H1_BASE}")
    a("s_lshl_b32 s54, s51, 11"); a("s_add_u32 s54, s54, s52"); a("s_lshl_b32 s55, s53, 9"); a("s_add_u32 s54, s54, s55")
    fold(112, 116, 118)
    a("s_mov_b64 exec, s[58:59]")
    a("buffer_store_dwordx4 v[116:119], v120, s[32:35], s54 offen sc1")
    a("s_mov_b64 exec, -1")
    stamp(2)
    a("s_add_u32 s53, s52, 4096")
    a("v_lshlrev_b32 v120, 4, v1")
    if opt.get("h1wait", 1): a("s_waitcnt vmcnt(0)")
    top = lbl("h1"); done = lbl("h1d")
    a(f"{top}:")
    for u in range(8):
        a(f"buffer_load_dwordx4 v[{32+4*u}:{35+4*u}], v120, s[32:35], s{52+(u>>2)} offen offset:{1024*(u&3)} sc1")
    a("s_waitcnt vmcnt(0)")
    check_tags([33 + 2 * i for i in range(16)], 123)
    a(f"s_cbranch_vccz {done}")
    spin_tail(top, 1)
    a(f"{done}:")
    for h in range(2):
        for e in range(2):
            b = 32 + 4 * h + 2 * e
            a(f"v_add_f32 v{b}, v{b}, v{b+8}"); a(f"v_add_f32 v{b+16}, v{b+16}, v{b+24}"); a(f"v_add_f32 v{b}, v{b}, v{b+16}")
    a("v_cvt_pk_bf16_f32 v8, v32, v34"); a("v_cvt_pk_bf16_f32 v9, v36, v38")
    a("v_lshlrev_b32 v120, 2, v1")
    a(f"ds_write_b32 v120, v8 offset:{L_QB}"); a(f"ds_write_b32 v120, v9 offset:{L_QB+256}")
    a("v_mov_b32 v121, 0"); a("v_mov_b32 v122, 1")
    a("s_waitcnt lgkmcnt(0)")
    a(f"ds_write_b32 v121, v122 offset:{L_QF}")
    stamp(3)
    a("s_setprio 0")
    a("s_branch L_W_role2")
    a("L_W_role:")
    a("s_barrier")
    tag_ready()
    a("L_W_role2:")
    a("s_cmp_ge_u32 s50, 13"); a("s_cbranch_scc1 L_plain")
    a("s_cmp_ge_u32 s50, 9"); a("s_cbranch_scc1 L_wo")

    a("s_and_b32 s51, s49, 7"); a("s_mul_i32 s51, s51, 18"); a("s_lshr_b32 s52, s49, 3"); a("s_mul_i32 s52, s52, 9")
    a("s_add_u32 s51, s51, s52"); a("s_add_u32 s51, s51, s50")
    srd(40, 22, 4608 * 1152)
    cls(121)
    a("v_bfe_u32 v122, v1, 2, 1"); a("v_cmp_eq_u32 vcc, 1, v122")
    a("v_mov_b32 v124, s18"); a("v_mov_b32 v125, s19"); a("v_mov_b32 v126, s20"); a("v_mov_b32 v127, s21")
    a("v_cndmask_b32 v124, v124, v126, vcc"); a("v_cndmask_b32 v125, v125, v127, vcc")
    a("s_lshl_b32 s52, s63, 3"); a("v_add_u32 v122, s52, v121"); a("v_mul_u32_u24 v122, 9216, v122")
    a("v_and_b32 v123, 3, v1"); a("v_lshl_add_u32 v122, v123, 4, v122")
    a("s_lshl_b32 s52, s51, 6"); a("v_add_u32 v122, s52, v122"); a("v_mov_b32 v123, 0")
    a("v_lshl_add_u64 v[124:125], v[122:123], 0, v[124:125]")
    a(f"s_mov_b32 s54, {64*9216}"); a("s_mov_b32 s55, 0")
    wgate(opt.get("ffngate", "issued"))
    fd = opt.get("ffndepth", 0)
    for t in range(9):
        throttle(t, fd)
        a(f"global_load_dwordx4 v[{32+4*t}:{35+4*t}], v[124:125], off nt")
        if t < 8: a("v_lshl_add_u64 v[124:125], v[124:125], 0, s[54:55]")
    a(f"v_mul_u32_u24 v122, {4*1152}, v121"); a("v_and_b32 v123, 7, v1"); a("v_lshl_add_u32 v122, v123, 4, v122")
    a(f"s_mul_i32 s52, s51, {32*1152}"); a("s_lshl_b32 s53, s63, 7"); a("s_add_u32 s52, s52, s53")
    for t in range(4): a(f"buffer_load_dwordx4 v[{68+4*t}:{71+4*t}], v122, s[40:43], s52 offen offset:{1152*t} nt")
    a("s_cmp_lg_u32 s63, 7"); a("s_cbranch_scc1 L_ffn_a")
    for t in range(4): a(f"buffer_load_dwordx4 v[{84+4*t}:{87+4*t}], v122, s[40:43], s52 offen offset:{1152*t+128} nt")
    a("L_ffn_a:")
    stamp(4)
    masks()
    a("v_mov_b32 v117, s48"); a("v_mov_b32 v119, s48")
    a("s_lshl_b32 s52, s63, 5"); a("v_lshl_add_u32 v120, v121, 2, s52")
    cp_local(122, 123)
    a("s_lshl_b32 s52, s63, 8"); a("v_lshl_add_u32 v123, v122, 3, s52")
    a(f"v_mul_u32_u24 v122, {H5_STRIDE}, v122")
    a("v_lshlrev_b32 v124, 2, v1")
    a("s_lshl_b32 s52, s63, 7"); a("v_add_u32 v125, s52, v124")
    a("v_lshl_add_u32 v126, v121, 4, s52")
    a(f"s_mul_i32 s52, s63, {32*H5_STRIDE}"); a("s_lshl_b32 s53, s51, 4"); a("s_add_u32 s52, s52, s53"); a(f"s_add_u32 s52, s52, {H5_BASE}")
    a(f"s_add_u32 s53, s52, {32*H5_STRIDE}")
    a("s_waitcnt vmcnt(0)")
    stamp(5)
    if opt.get("nopub"): a("s_branch L_exit")
    a("s_barrier")
    for t in range(0, 8, 2): a(f"ds_read2st64_b32 v[{16+t}:{17+t}], v120 offset0:{t} offset1:{t+1}")
    a(f"ds_read_b32 v24, v120 offset:{8*256}")
    a("s_waitcnt lgkmcnt(0)")
    sel_mfma([16 + t for t in range(9)], [[32 + 4 * t] for t in range(9)], [112], AB=104)
    fold(112, 8, 9)
    a("s_mov_b64 exec, s[58:59]")
    a(f"ds_write_b64 v123, v[8:9] offset:{L_GU}")
    a("s_mov_b64 exec, -1")
    a("s_waitcnt lgkmcnt(0)")
    a("s_barrier")
    assert L_GU % 256 == 0
    for t in range(0, 8, 2): a(f"ds_read2st64_b32 v[{16+t}:{17+t}], v124 offset0:{L_GU//256+t} offset1:{L_GU//256+t+1}")
    a("s_waitcnt lgkmcnt(0)")
    for t in range(0, 8, 2): a(f"v_add_f32 v{16+t}, v{16+t}, v{17+t}")
    a("v_add_f32 v16, v16, v18"); a("v_add_f32 v20, v20, v22"); a("v_add_f32 v16, v16, v20")
    rnd(16)
    a(f"v_mul_f32 v17, {0xbfb8aa3b:#x}, v16"); a("v_exp_f32 v17, v17"); a("v_add_f32 v17, 1.0, v17"); a("v_rcp_f32 v17, v17")
    a("v_mul_f32 v17, v17, v16"); rnd(17)
    a("v_permlane32_swap_b32 v16, v18")
    a("v_mul_f32 v17, v17, v18"); a("v_cvt_pk_bf16_f32 v17, v17, v17")
    a("s_mov_b32 exec_hi, 0")
    a(f"ds_write_b32 v125, v17 offset:{L_ACT}")
    a("s_mov_b64 exec, -1")
    a("s_waitcnt lgkmcnt(0)")
    a(f"ds_read_b128 v[16:19], v126 offset:{L_ACT}")
    a("s_waitcnt lgkmcnt(0)")
    stamp(6)
    a("s_cmp_eq_u32 s63, 7"); a("s_cbranch_scc1 L_ffn_b")
    sel_mfma([16 + t for t in range(4)], [[68 + 4 * t] for t in range(4)], [112], AB=104)
    fold(112, 116, 118)
    a("s_mov_b64 exec, s[58:59]")
    a("buffer_store_dwordx4 v[116:119], v122, s[32:35], s52 offen sc1")
    stamp(7)
    a("s_branch L_exit")
    a("L_ffn_b:")
    a("v_mov_b32 v13, s48"); a("v_mov_b32 v15, s48")
    sel_mfma([16 + t for t in range(4)], [[68 + 4 * t, 84 + 4 * t] for t in range(4)], [112, 8], AB=104)
    fold(112, 116, 118); fold(8, 12, 14)
    a("s_mov_b64 exec, s[58:59]")
    a("buffer_store_dwordx4 v[116:119], v122, s[32:35], s52 offen sc1")
    a("buffer_store_dwordx4 v[12:15], v122, s[32:35], s53 offen sc1")
    stamp(7)
    a("s_branch L_exit")

    a("L_wo:")
    a("s_sub_u32 s51, s50, 9"); a("s_lshl_b32 s52, s49, 2"); a("s_add_u32 s51, s51, s52")
    srd(40, 12, 4096 * 1152)
    cls(121)
    a(f"v_mul_u32_u24 v122, {8*1152}, v121"); a("v_and_b32 v123, 7, v1"); a("v_lshl_add_u32 v122, v123, 4, v122")
    a(f"s_mul_i32 s52, s51, {64*1152}"); a("s_lshl_b32 s53, s63, 7"); a("s_add_u32 s52, s52, s53")
    a(f"s_add_u32 s53, s52, {3*1152}"); a(f"s_add_u32 s54, s52, {6*1152}")
    wgate(opt.get("wogate", "issued"))
    for t in range(8): a(f"buffer_load_dwordx4 v[{32+4*t}:{35+4*t}], v122, s[40:43], s{52+t//3} offen offset:{1152*(t%3)} nt")
    a("s_cmp_lg_u32 s63, 7"); a("s_cbranch_scc1 L_wo_a")
    for t in range(8): a(f"buffer_load_dwordx4 v[{64+4*t}:{67+4*t}], v122, s[40:43], s{52+t//3} offen offset:{1152*(t%3)+128} nt")
    a("L_wo_a:")
    stamp(4)
    masks()
    a("v_mov_b32 v117, s48"); a("v_mov_b32 v119, s48"); a("v_mov_b32 v13, s48"); a("v_mov_b32 v15, s48")
    a("v_lshlrev_b32 v120, 5, v121")
    cp_local(122, 123); a(f"v_mul_u32_u24 v122, {H3_STRIDE}, v122")
    a(f"s_mul_i32 s52, s63, {32*H3_STRIDE}"); a("s_lshl_b32 s53, s51, 4"); a("s_add_u32 s52, s52, s53"); a(f"s_add_u32 s52, s52, {H3_BASE}")
    a(f"s_add_u32 s53, s52, {32*H3_STRIDE}")
    a("s_waitcnt vmcnt(0)")
    stamp(5)
    if opt.get("nopub"): a("s_branch L_exit")
    a("s_barrier")
    a(f"ds_read_b128 v[16:19], v120 offset:{L_VEC}"); a(f"ds_read_b128 v[20:23], v120 offset:{L_VEC+16}")
    a("s_waitcnt lgkmcnt(0)")
    stamp(6)
    a("s_cmp_eq_u32 s63, 7"); a("s_cbranch_scc1 L_wo_b")
    sel_mfma([16 + t for t in range(8)], [[32 + 4 * t] for t in range(8)], [112], AB=104)
    fold(112, 116, 118)
    a("s_mov_b64 exec, s[58:59]")
    a("buffer_store_dwordx4 v[116:119], v122, s[32:35], s52 offen sc1")
    stamp(7)
    a("s_branch L_exit")
    a("L_wo_b:")
    sel_mfma([16 + t for t in range(8)], [[32 + 4 * t, 64 + 4 * t] for t in range(8)], [112, 8], AB=104)
    fold(112, 116, 118); fold(8, 12, 14)
    a("s_mov_b64 exec, s[58:59]")
    a("buffer_store_dwordx4 v[116:119], v122, s[32:35], s52 offen sc1")
    a("buffer_store_dwordx4 v[12:15], v122, s[32:35], s53 offen sc1")
    stamp(7)
    a("s_branch L_exit")

    a("L_plain:")
    if opt.get("nopoll"): a("s_branch L_exit")
    a("s_cmp_eq_u32 s63, 0"); a("s_cbranch_scc1 L_exit")
    a("s_mul_i32 s51, s49, 3"); a("s_add_u32 s51, s51, s50"); a("s_sub_u32 s51, s51, 13")
    a("s_cmp_lg_u32 s63, 7"); a("s_cbranch_scc1 L_red")
    a("s_cmp_lg_u32 s51, 0"); a("s_cbranch_scc1 L_exit")
    srd(44, 16, 1152)
    for r in range(80, 86): a(f"v_mov_b32 v{r}, 0")
    a("v_lshlrev_b32 v120, 3, v1")
    a("s_mov_b64 exec, s[56:57]")
    for u in range(3): a(f"buffer_load_dwordx2 v[{80+2*u}:{81+2*u}], v120, s[44:47], 0 offen offset:{384*u}")
    a("s_mov_b64 exec, -1")
    wait_kv_flags(13, 14)
    a("s_branch L_h4poll")
    a("L_red:")
    a("s_mul_i32 s51, s51, 6"); a("s_add_u32 s51, s51, s63"); a("s_sub_u32 s51, s51, 1")
    a("s_lshl_b32 s52, s51, 2")
    a("s_load_dword s62, s[4:5], s52")
    srd(44, 24, 1152)
    a("v_lshlrev_b32 v23, 4, v1")
    a(f"s_mul_i32 s53, s51, {H3_STRIDE}"); a(f"s_add_u32 s53, s53, {H3_BASE}")
    a(f"s_mul_i32 s54, s51, {H5_STRIDE}"); a(f"s_add_u32 s54, s54, {H5_BASE}")
    a("s_lshl_b32 s55, s51, 3"); a(f"s_add_u32 s55, s55, {H4_BASE}")
    a(f"v_mul_u32_u24 v24, {H4_STRIDE}, v1")
    a("v_mov_b32 v27, s48")
    a("v_mov_b32 v40, 0"); a("v_mov_b32 v41, s48"); a("v_mov_b32 v42, 0"); a("v_mov_b32 v43, s48")
    a("v_cmp_gt_u32 s[30:31], 32, v1")
    a("v_lshrrev_b32 v25, 5, v1"); a("v_lshlrev_b32 v25, 1, v25")
    a("s_waitcnt lgkmcnt(0)")
    a("s_lshl_b32 s61, s62, 16"); a("s_and_b32 s62, s62, 0xffff0000")
    a("v_mov_b32 v20, s62"); a("v_mov_b32 v21, s61"); a("v_cndmask_b32 v20, v20, v21, s[30:31]")
    wait_kv_flags(13, 14)
    a("s_setprio 3")
    stamp(4)
    top = lbl("h3"); done = lbl("h3d")
    a(f"{top}:")
    a("buffer_load_dwordx4 v[32:35], v23, s[32:35], s53 offen sc1")
    a("s_waitcnt vmcnt(0)")
    check_tags([33, 35], 13)
    a(f"s_cbranch_vccz {done}")
    spin_tail(top, opt.get("h3sleep", None))
    a(f"{done}:")
    stamp(5)
    def half_sum(x, y, t):
        a(f"v_permlane32_swap_b32 v{x}, v{y}"); a(f"v_add_f32 v{x}, v{x}, v{y}")
        for r in (8, 4, 2, 1): a(f"v_add_f32_dpp v{x}, v{x}, v{x} row_ror:{r} row_mask:0xf bank_mask:0xf")
        a(f"v_mov_b32 v{t}, v{x}"); a(f"v_permlane16_swap_b32 v{x}, v{t}"); a(f"v_add_f32 v{x}, v{x}, v{t}")
    half_sum(32, 34, 13)
    rnd(32)
    a("v_add_f32 v20, v20, v32"); rnd(20)
    a("v_readlane_b32 s61, v20, 32")
    a("v_lshrrev_b32 v26, 16, v20"); a("v_or_b32 v26, s61, v26")
    a(f"s_mov_b64 exec, {(1<<H4_REPS)-1:#x}")
    a("buffer_store_dwordx2 v[26:27], v24, s[32:35], s55 offen sc1")
    a("s_mov_b64 exec, -1")
    stamp(6)
    top = lbl("h5"); done = lbl("h5d")
    a(f"{top}:")
    a("buffer_load_dwordx4 v[32:35], v23, s[32:35], s54 offen sc1")
    a("buffer_load_dwordx4 v[36:39], v23, s[32:35], s54 offen offset:1024 sc1")
    a("s_mov_b64 exec, 0x1ffff")
    a("buffer_load_dwordx4 v[40:43], v23, s[32:35], s54 offen offset:2048 sc1")
    a("s_mov_b64 exec, -1")
    a("s_waitcnt vmcnt(0)")
    check_tags([33, 35, 37, 39, 41, 43], 13)
    a(f"s_cbranch_vccz {done}")
    spin_tail(top, opt.get("h5sleep", None))
    a(f"{done}:")
    a("v_readlane_b32 s61, v40, 16"); a("v_readlane_b32 s62, v42, 16")
    a("v_add_f32 v32, v32, v36"); a("v_add_f32 v34, v34, v38")
    a("s_mov_b64 exec, 0xffff")
    a("v_add_f32 v32, v32, v40"); a("v_add_f32 v34, v34, v42")
    a("s_mov_b64 exec, -1")
    a("s_lshl_b32 s53, s61, 16"); a("s_and_b32 s61, s61, 0xffff0000")
    a("v_mov_b32 v21, s61"); a("v_mov_b32 v22, s53"); a("v_cndmask_b32 v21, v21, v22, s[30:31]")
    half_sum(32, 34, 13)
    rnd(32)
    a("v_mul_f32 v32, s62, v32"); rnd(32)
    a("v_add_f32 v32, v21, v32"); rnd(32)
    a("v_add_f32 v32, v20, v32"); a("v_cvt_pk_bf16_f32 v32, v32, v32")
    a("s_mov_b32 exec_lo, 1"); a("s_mov_b32 exec_hi, 1")
    a("buffer_store_short v32, v25, s[44:47], s52 offen")
    a("s_cmp_lg_u32 s51, 0"); a("s_cbranch_scc1 L_red_end")
    a("s_mov_b64 exec, 1")
    a("buffer_store_dword v27, v25, s[32:35], 0 offen sc1")
    a("L_red_end:")
    stamp(7)
    a("L_exit:")
    if diag == "dbg":
        a("s_mov_b64 exec, -1")
        a("s_waitcnt lgkmcnt(0)")
        srd(44, 26, 256)
        a("v_mov_b32 v8, 0")
        for i in range(8): a(f"v_writelane_b32 v8, s{64+2*i}, {i}")
        a("s_not_b32 s61, s64"); a("v_writelane_b32 v8, s61, 8")
        tabs = {"kvf": [1, 63, 63, 63, 4, 5, 10, 63, 0], "kvw": [1, 63, 63, 63, 4, 5, 6, 63, 0], "wf": [1, 63, 2, 3, 63, 11, 63, 12, 0],
                "ww": [1, 63, 2, 3, 63, 7, 63, 8, 0], "wp": [1, 63, 2, 3, 63, 9, 14, 13, 0]}
        def settab(t):
            for i, wd in enumerate(tabs[t]):
                a(f"s_mov_b32 s61, {4*wd}"); a(f"v_writelane_b32 v9, s61, {i}")
        a("v_mov_b32 v9, 252")
        a("s_cmp_ge_u32 s3, 8"); a("s_cbranch_scc1 L_dbg_w")
        a("s_cmp_lt_u32 s50, 9"); a("s_cbranch_scc1 L_dbg_kvf")
        settab("kvw"); a("s_branch L_dbg_go")
        a("L_dbg_kvf:"); settab("kvf"); a("s_branch L_dbg_go")
        a("L_dbg_w:")
        a("s_cmp_lt_u32 s50, 9"); a("s_cbranch_scc1 L_dbg_wf")
        a("s_cmp_lt_u32 s50, 13"); a("s_cbranch_scc1 L_dbg_ww")
        a("s_cmp_eq_u32 s3, 15"); a("s_cbranch_scc1 L_end")
        settab("wp"); a("s_branch L_dbg_go")
        a("L_dbg_wf:"); settab("wf"); a("s_branch L_dbg_go")
        a("L_dbg_ww:"); settab("ww")
        a("L_dbg_go:")
        a("s_mov_b64 exec, 0x1ff")
        a("buffer_atomic_umax v8, v9, s[44:47], 0 offen sc1")
    elif diag:
        a("s_mov_b64 exec, 1")
        a("s_waitcnt lgkmcnt(0)")
        for i in range(8): a(f"v_mov_b32 v{8+i}, s{64+2*i}")
        a("s_lshl_b32 s61, s2, 9"); a("s_lshl_b32 s62, s3, 5"); a("s_add_u32 s61, s61, s62"); a(f"s_add_u32 s61, s61, {STAMP_BASE}")
        a("v_mov_b32 v1, 0")
        a("buffer_store_dwordx4 v[8:11], v1, s[32:35], s61 offen")
        a("buffer_store_dwordx4 v[12:15], v1, s[32:35], s61 offen offset:16")
    a("L_end:")
    a("s_endpgm")
    a.raw('.section .rodata,"a"'); a.raw(".p2align 6")
    a.raw(f".amdhsa_kernel {NAME}_kernel")
    a.raw("  .amdhsa_next_free_vgpr 128"); a.raw("  .amdhsa_next_free_sgpr 96"); a.raw("  .amdhsa_accum_offset 128")
    a.raw("  .amdhsa_group_segment_fixed_size 0"); a.raw("  .amdhsa_kernarg_size 104")
    a.raw("  .amdhsa_user_sgpr_count 2"); a.raw("  .amdhsa_user_sgpr_kernarg_segment_ptr 1"); a.raw("  .amdhsa_system_sgpr_workgroup_id_x 1")
    a.raw("  .amdhsa_float_denorm_mode_32 3")
    a.raw(".end_amdhsa_kernel")
    return a.text()

if __name__ == "__main__":
    diag = "dbg" if "--dbg" in sys.argv else ("--diag" in sys.argv)
    out = [x for x in sys.argv[1:] if not x.startswith("--")][0]
    open(out, "w").write(gen(diag=diag))

def report(show, w, j, rel):
    allw = w >= 0
    show("KV all", allw, list(range(8)))
    show("KV0 ffn(h4)", j < 9, [0])
    show("KV0 wo(h2)", (j >= 9) & (j < 13), [0])
    show("Q wave", allw, [8])
    show("W ffn", j < 9, list(range(8, 16)))
    show("W wo", (j >= 9) & (j < 13), list(range(8, 16)))
    show("reducers", j >= 13, list(range(9, 15)))
    show("stats", w == 13 * 8, [15])
```

```python
import sys
from asmlib import Asm
NAME = "sequential_preLN__sliding_block_cached__moe_arch_mod__decode"

H1_BASE = 0x1000
H2_BASE = 0x21000; H2_STRIDE = 8576
H3_BASE = 0xA7000; H3_STRIDE = 1152
H4_BASE = 0xF8000; H4_STRIDE = 2432; H4_REPS = 8
H5_BASE = 0xFD000; H5_STRIDE = 2432
WS_USED = 0x1A8000
STAMP_BASE = 0x400000
L_VEC = 0x0000
L_QB = 0x0900
L_KVF = 0x0B00
L_KIF = 0x0B20
L_QF = 0x0B40
L_PUB = 0x0B44
L_ML = 0x0B80
L_OP = 0x0C00
L_GU = 0x2C00
L_ACT = 0x3400
LDS_BYTES = 0x3800
LOG2E = 0x3fb8aa3b
SCALE = 0x3db504f3
INV576 = 0x3ae38e39
EPS = 0x3727c5ac
SPIN = 1 << 18

HEADER = open("cdna_kernels/" + NAME + ".s.ref").read().split("; Override launch")[0]

def gen(diag=False, opt=None):
    opt = opt or {}
    a = Asm()
    nst = [0]
    def stamp(i):
        if diag: a(f"s_memrealtime s[{64+2*i}:{65+2*i}]")
    uid = [0]
    def lbl(p):
        uid[0] += 1; return f"L_{p}_{uid[0]}"

    def wave_sum(x, t, op="add"):
        for r in (8, 4, 2, 1):
            a(f"v_{op}_f32_dpp v{x}, v{x}, v{x} row_ror:{r} row_mask:0xf bank_mask:0xf")
        a(f"v_mov_b32 v{t}, v{x}"); a(f"v_permlane16_swap_b32 v{x}, v{t}"); a(f"v_{op}_f32 v{x}, v{x}, v{t}")
        a(f"v_mov_b32 v{t}, v{x}"); a(f"v_permlane32_swap_b32 v{x}, v{t}"); a(f"v_{op}_f32 v{x}, v{x}, v{t}")
    def rnd(x):
        a(f"v_cvt_pk_bf16_f32 v{x}, v{x}, v{x}"); a(f"v_and_b32 v{x}, 0xffff0000, v{x}")
    def masks():
        a("v_and_b32 v8, 1, v1"); a("v_lshlrev_b32 v8, 4, v8"); a("v_mov_b32 v9, 0xffff"); a("v_lshlrev_b32 v8, v8, v9")
        a("v_bfe_u32 v9, v1, 1, 2")
        for d in range(4):
            a(f"v_cmp_eq_u32 vcc, {d}, v9"); a(f"v_cndmask_b32 v{4+d}, 0, v8, vcc")
    def tag_ready():
        a("s_waitcnt lgkmcnt(0)")
        a("s_mul_i32 s48, s48, 1664525"); a("s_add_u32 s48, s48, 1013904223")
    def spin_tail(top, sleep=None):
        if sleep is not None: a(f"s_sleep {sleep}")
        a("s_sub_u32 s60, s60, 1"); a("s_cmp_lg_u32 s60, 0"); a(f"s_cbranch_scc1 {top}"); a("s_branch L_exit")
    def check_tags(regs, acc):
        a(f"v_xor_b32 v{acc}, s48, v{regs[0]}")
        for r in regs[1:]: a(f"v_bitop3_b32 v{acc}, v{acc}, v{r}, s48 bitop3:0xf6")
        a(f"v_cmp_ne_u32 vcc, 0, v{acc}")
    def wait_kv_flags(tmp_addr, tmp, off=L_KVF, n=8):
        top = lbl("kvf"); done = lbl("kvfd")
        a(f"v_and_b32 v{tmp_addr}, {n-1}, v1"); a(f"v_lshlrev_b32 v{tmp_addr}, 2, v{tmp_addr}")
        a(f"{top}:")
        a(f"ds_read_b32 v{tmp}, v{tmp_addr} offset:{off}"); a("s_waitcnt lgkmcnt(0)")
        a(f"v_cmp_eq_u32 vcc, 0, v{tmp}"); a(f"s_cbranch_vccz {done}")
        spin_tail(top, 2)
        a(f"{done}:")
    def wgate(mode):
        if mode == "issued": wait_kv_flags(10, 11, L_KIF)
        elif mode == "done": wait_kv_flags(10, 11, L_KVF)
        elif mode == "pub": wait_kv_flags(10, 11, L_PUB, 1)
    def throttle(i, depth):
        if depth and i >= depth: a(f"s_waitcnt vmcnt({depth-1})")
    def layernorm(P, F, T):
        for i in range(6):
            a(f"v_lshlrev_b32 v{F+2*i}, 16, v{P[i]}"); a(f"v_and_b32 v{F+2*i+1}, 0xffff0000, v{P[i]}")
        S = T; U = T + 1; M = T + 2; Q = T + 3; D = T + 4
        for i in range(6): a(f"v_add_f32 v{D+i}, v{F+2*i}, v{F+2*i+1}")
        a(f"v_add_f32 v{D}, v{D}, v{D+1}"); a(f"v_add_f32 v{D+2}, v{D+2}, v{D+3}"); a(f"v_add_f32 v{D+4}, v{D+4}, v{D+5}")
        a(f"v_add_f32 v{S}, v{D}, v{D+2}"); a(f"v_add_f32 v{S}, v{S}, v{D+4}")
        a(f"v_mov_b32 v{Q}, 0")
        wave_sum(S, U)
        a(f"v_mul_f32 v{S}, {INV576:#x}, v{S}")
        a("s_mov_b64 exec, s[56:57]")
        for i in range(12): a(f"v_sub_f32 v{D+i}, v{F+i}, v{S}")
        for i in range(12): a(f"v_fmac_f32 v{Q}, v{D+i}, v{D+i}")
        a("s_mov_b64 exec, -1")
        a(f"v_mov_b32 v{M}, v{S}"); rnd(M)
        wave_sum(Q, U)
        for i in range(12): a(f"v_sub_f32 v{F+i}, v{F+i}, v{M}")
        a(f"v_mul_f32 v{Q}, {INV576:#x}, v{Q}"); rnd(Q)
        a(f"v_add_f32 v{Q}, {EPS:#x}, v{Q}"); rnd(Q)
        a(f"v_sqrt_f32 v{Q}, v{Q}"); rnd(Q)
        a(f"v_rcp_f32 v{Q}, v{Q}")
        for i in range(6): a(f"v_cvt_pk_bf16_f32 v{D+i}, v{F+2*i}, v{F+2*i+1}")
        for i in range(6):
            a(f"v_lshlrev_b32 v{F+2*i}, 16, v{D+i}"); a(f"v_and_b32 v{F+2*i+1}, 0xffff0000, v{D+i}")
        for i in range(12): a(f"v_mul_f32 v{F+i}, v{F+i}, v{Q}")
        for i in range(12): a(f"v_cvt_pk_bf16_f32 v{F+i}, v{F+i}, v{F+i}")
    def vec_write(F, addr):
        a(f"v_lshlrev_b32 v{addr}, 4, v1")
        a("s_mov_b64 exec, s[56:57]")
        for u in range(3): a(f"ds_write_b128 v{addr}, v[{F+4*u}:{F+4*u+3}] offset:{L_VEC+768*u}")
        a("s_mov_b64 exec, -1")
    def sel_mfma(vals, wregs, accs, AB=104, waits=None):
        n = len(vals)
        def ands(t):
            b = AB + 4 * (t & 1)
            for d in range(4): a(f"v_and_b32 v{b+d}, v{vals[t]}, v{4+d}")
        ands(0)
        for t in range(n):
            if t + 1 < n: ands(t + 1)
            if waits and waits[t] is not None: a(waits[t])
            b = AB + 4 * (t & 1)
            for w, c in zip(wregs[t], accs):
                cs = "0" if t == 0 else f"v[{c}:{c+3}]"
                a(f"v_mfma_f32_16x16x32_bf16 v[{c}:{c+3}], v[{b}:{b+3}], v[{w}:{w+3}], {cs}")
    def fold(c, d0, d1):
        a(f"v_permlane32_swap_b32 v{c}, v{c+2}"); a(f"v_permlane32_swap_b32 v{c+1}, v{c+3}")
        a(f"v_add_f32_dpp v{d0}, v{c+2}, v{c} row_ror:8 row_mask:0xf bank_mask:0xf")
        a(f"v_add_f32_dpp v{d1}, v{c+3}, v{c+1} row_ror:8 row_mask:0xf bank_mask:0xf")
    def cp_local(dst, t):
        a(f"v_and_b32 v{dst}, 7, v1"); a(f"v_lshlrev_b32 v{dst}, 2, v{dst}")
        a(f"v_bfe_u32 v{t}, v1, 4, 1"); a(f"v_lshl_add_u32 v{dst}, v{t}, 1, v{dst}")
        a(f"v_lshrrev_b32 v{t}, 5, v1"); a(f"v_add_u32 v{dst}, v{dst}, v{t}")
    def cls(dst):
        a(f"v_bfe_u32 v{dst}, v1, 3, 1"); a(f"v_lshl_add_u32 v{dst}, v{dst}, 2, v3")
    def srd(base, ptr, size):
        a(f"s_mov_b32 s{base}, s{ptr}"); a(f"s_mov_b32 s{base+1}, s{ptr+1}"); a(f"s_mov_b32 s{base+2}, {size:#x}"); a(f"s_mov_b32 s{base+3}, 0x20000")

    a.raw(HEADER.rstrip())
    a.raw(f"; @launch grid=(256,1,1) block=(1024,1,1) lds={LDS_BYTES}")
    a.raw('.amdgcn_target "amdgcn-amd-amdhsa--gfx950"')
    a.raw(".text"); a.raw(f".globl {NAME}_kernel"); a.raw(".p2align 8"); a.raw(f".type {NAME}_kernel,@function")
    a.raw(f"{NAME}_kernel:")
    if diag:
        for i in range(1, 8): a(f"s_mov_b64 s[{64+2*i}:{65+2*i}], 0")
    stamp(0)
    a("s_cmp_ge_u32 s2, 256"); a("s_cbranch_scc1 L_end")
    a("s_load_dwordx16 s[4:19], s[0:1], 0")
    a("s_load_dwordx8 s[20:27], s[0:1], 64")
    a("s_load_dwordx2 s[28:29], s[0:1], 96")
    a("v_lshrrev_b32 v2, 6, v0")
    a("v_and_b32 v1, 63, v0")
    a("v_readfirstlane_b32 s3, v2")
    a("v_lshlrev_b32 v4, 2, v1"); a("v_mov_b32 v5, 0")
    a("s_mov_b32 exec_hi, 0"); a(f"ds_write_b32 v4, v5 offset:{L_KVF}"); a("s_mov_b64 exec, -1")
    a("v_and_b32 v2, 15, v1"); a("v_lshrrev_b32 v3, 4, v1")
    a("s_and_b32 s49, s2, 7"); a("s_lshr_b32 s51, s2, 7"); a("s_lshl_b32 s51, s51, 3"); a("s_add_u32 s49, s49, s51")
    a("s_lshr_b32 s50, s2, 3"); a("s_and_b32 s50, s50, 15")
    a(f"s_mov_b32 s60, {SPIN}")
    a("s_mov_b32 s56, -1"); a("s_mov_b32 s57, 0xffff")
    a("s_mov_b32 s58, 0x00ff00ff"); a("s_mov_b32 s59, 0x00ff00ff")
    a("s_waitcnt lgkmcnt(0)")
    a("s_load_dword s48, s[28:29], 0")
    srd(32, 28, WS_USED if not diag else 0x800000)
    a("s_cmp_ge_u32 s3, 8"); a("s_cbranch_scc1 L_W")

    a("s_setprio 2")
    srd(36, 6, 0x10000000); srd(40, 8, 0x10000000)
    a("s_lshl_b32 s51, s49, 24"); a("s_lshl_b32 s52, s50, 16"); a("s_add_u32 s51, s51, s52")
    a("s_lshl_b32 s52, s3, 13"); a("s_add_u32 s51, s51, s52"); a("s_add_u32 s51, s51, 0xF00000")
    a("s_add_u32 s52, s51, 4096")
    a("v_lshlrev_b32 v96, 8, v2"); a("v_lshl_add_u32 v96, v3, 4, v96")
    a("v_lshlrev_b32 v97, 10, v3"); a("v_lshl_add_u32 v97, v2, 4, v97")
    a("s_barrier")
    kd = opt.get("kvdepth", 4)
    for T in range(2):
        for s in range(4):
            r = 32 + 16 * T + 4 * s
            throttle(4 * T + s, kd)
            a(f"buffer_load_dwordx4 v[{r}:{r+3}], v96, s[36:39], s{51+T} offen offset:{64*s} nt")
    for T in range(2):
        for rr in range(4):
            r = 64 + 16 * T + 4 * rr
            throttle(8 + 4 * T + rr, kd)
            a(f"buffer_load_dwordx4 v[{r}:{r+3}], v97, s[40:43], s{51+T} offen offset:{256*rr} nt")
    a("s_lshl_b32 s61, s3, 2"); a("v_mov_b32 v116, s61"); a("v_mov_b32 v117, 1")
    a(f"ds_write_b32 v116, v117 offset:{L_KIF}")
    stamp(1)
    masks()
    tag_ready()
    for r in (101, 103, 105, 107, 109, 111): a(f"v_mov_b32 v{r}, s48")
    a("v_lshrrev_b32 v112, 5, v1"); a("v_bfe_u32 v113, v1, 3, 1"); a("v_lshl_add_u32 v112, v112, 1, v113")
    a(f"v_mul_u32_u24 v114, {H2_STRIDE}, v112")
    a("v_and_b32 v112, 7, v1"); a("v_lshlrev_b32 v112, 6, v112"); a("v_bfe_u32 v113, v1, 4, 1"); a("v_lshl_add_u32 v112, v113, 5, v112")
    a("v_add_u32 v112, v112, v114")
    a(f"s_mul_i32 s53, s49, {4*H2_STRIDE}"); a(f"s_add_u32 s53, s53, {H2_BASE}")
    a("s_lshl_b32 s54, s50, 9"); a("s_add_u32 s54, s54, s53")
    a("s_lshl_b32 s55, s50, 4"); a("s_add_u32 s55, s55, s53"); a("s_add_u32 s55, s55, 8192")
    a("v_bfe_u32 v98, v1, 3, 1"); a("v_lshlrev_b32 v98, 8, v98"); a("v_lshl_add_u32 v98, v3, 4, v98")
    a("v_mov_b32 v99, 0")
    top = lbl("qf"); done = lbl("qfd")
    a(f"{top}:")
    a(f"ds_read_b32 v115, v99 offset:{L_QF}"); a("s_waitcnt lgkmcnt(0)")
    a("v_cmp_ne_u32 vcc, 0, v115"); a(f"s_cbranch_vccnz {done}")
    spin_tail(top, 2)
    a(f"{done}:")
    for s in range(4): a(f"ds_read_b128 v[{16+4*s}:{19+4*s}], v98 offset:{L_QB+64*s}")
    a("s_waitcnt lgkmcnt(0)")
    stamp(2)
    for T in range(2):
        a(f"s_waitcnt vmcnt({12-4*T})")
        for s in range(4):
            r = 32 + 16 * T + 4 * s; c = 8 + 4 * T
            cs = "0" if s == 0 else f"v[{c}:{c+3}]"
            a(f"v_mfma_f32_16x16x32_bf16 v[{c}:{c+3}], v[{r}:{r+3}], v[{16+4*s}:{19+4*s}], {cs}")
    for i in range(4): a(f"v_cvt_pk_bf16_f32 v{16+i}, v{8+2*i}, v{9+2*i}")
    for i in range(4): a(f"v_lshlrev_b32 v{8+2*i}, 16, v{16+i}"); a(f"v_and_b32 v{9+2*i}, 0xffff0000, v{16+i}")
    for i in range(8): a(f"v_mul_f32 v{8+i}, {SCALE:#x}, v{8+i}")
    for i in range(4): a(f"v_cvt_pk_bf16_f32 v{16+i}, v{8+2*i}, v{9+2*i}")
    for i in range(4): a(f"v_lshlrev_b32 v{8+2*i}, 16, v{16+i}"); a(f"v_and_b32 v{9+2*i}, 0xffff0000, v{16+i}")
    a("v_max3_f32 v20, v8, v9, v10"); a("v_max3_f32 v21, v11, v12, v13"); a("v_max3_f32 v20, v20, v14, v15"); a("v_max_f32 v20, v20, v21")
    a("v_mov_b32 v21, v20"); a("v_permlane16_swap_b32 v20, v21"); a("v_max_f32 v20, v20, v21")
    a("v_mov_b32 v21, v20"); a("v_permlane32_swap_b32 v20, v21"); a("v_max_f32 v20, v20, v21")
    a(f"s_mov_b32 s61, {LOG2E:#x}")
    a("v_mul_f32 v20, s61, v20")
    for i in range(8): a(f"v_fma_f32 v{8+i}, v{8+i}, s61, -v20")
    for i in range(8): a(f"v_exp_f32 v{8+i}, v{8+i}")
    for i in range(8): a(f"v_cvt_pk_bf16_f32 v{24+i}, v{8+i}, v{8+i}")
    a("v_add_f32 v21, v8, v9"); a("v_add_f32 v22, v10, v11"); a("v_add_f32 v23, v12, v13"); a("v_add_f32 v8, v14, v15")
    a("v_add_f32 v21, v21, v22"); a("v_add_f32 v23, v23, v8"); a("v_add_f32 v21, v21, v23")
    a("v_mov_b32 v22, v21"); a("v_permlane16_swap_b32 v21, v22"); a("v_add_f32 v21, v21, v22")
    a("v_mov_b32 v22, v21"); a("v_permlane32_swap_b32 v21, v22"); a("v_add_f32 v21, v21, v22")
    a("v_bfe_u32 v22, v1, 3, 1"); a("v_lshlrev_b32 v22, 6, v22"); a("s_lshl_b32 s61, s3, 3"); a("v_add_u32 v22, s61, v22")
    a("s_mov_b64 exec, 0x101"); a(f"ds_write_b64 v22, v[20:21] offset:{L_ML}"); a("s_mov_b64 exec, -1")
    a("s_lshl_b32 s61, s3, 10"); a("v_lshlrev_b32 v23, 4, v1"); a("v_add_u32 v22, s61, v23")
    stamp(3)
    sel_mfma([24 + i for i in range(8)], [[64 + 4 * i] for i in range(8)], [8], AB=32, waits=[f"s_waitcnt vmcnt({7-i})" for i in range(8)])
    a(f"ds_write_b128 v22, v[8:11] offset:{L_OP}")
    a("v_and_b32 v13, 7, v1"); a("v_lshlrev_b32 v13, 2, v13")
    a("s_waitcnt lgkmcnt(0)")
    a(f"ds_write_b32 v116, v117 offset:{L_KVF}")
    a(f"ds_read_b32 v14, v13 offset:{L_KVF}")
    a("v_lshrrev_b32 v15, 5, v1"); a("v_lshlrev_b32 v15, 6, v15"); a("v_lshl_add_u32 v15, v13, 1, v15")
    a("s_waitcnt lgkmcnt(0)")
    stamp(4)
    a("v_cmp_eq_u32 vcc, 0, v14"); a("s_cbranch_vccnz L_kv_after")
    a(f"ds_read_b64 v[16:17], v15 offset:{L_ML}")
    for k in range(8): a(f"ds_read_b128 v[{32+4*k}:{35+4*k}], v23 offset:{L_OP+1024*k}")
    a("s_waitcnt lgkmcnt(8)" if not diag else "s_waitcnt lgkmcnt(0)")
    a("v_max_f32_dpp v108, v16, v16 row_ror:4 row_mask:0xf bank_mask:0xf")
    a("v_max_f32_dpp v108, v108, v108 row_ror:2 row_mask:0xf bank_mask:0xf")
    a("v_max_f32_dpp v108, v108, v108 row_ror:1 row_mask:0xf bank_mask:0xf")
    a("v_sub_f32 v16, v16, v108"); a("v_exp_f32 v16, v16")
    a("v_mul_f32 v110, v16, v17")
    a("s_waitcnt lgkmcnt(0)")
    for k in range(8):
        for r in range(4):
            op = "v_mul_f32_dpp" if k == 0 else "v_fmac_f32_dpp"
            a(f"{op} v{100+2*r}, v16, v{32+4*k+r} row_newbcast:{k} row_mask:0xf bank_mask:0xf")
        if k in (0, 1, 2):
            a(f"v_add_f32_dpp v110, v110, v110 row_ror:{4>>k} row_mask:0xf bank_mask:0xf")
    if not opt.get("nopub"):
        a("buffer_store_dwordx4 v[100:103], v112, s[32:35], s54 offen sc1")
        a("buffer_store_dwordx4 v[104:107], v112, s[32:35], s54 offen offset:16 sc1")
    a("s_mov_b32 exec_lo, 0x101"); a("s_mov_b32 exec_hi, 0x101")
    a("buffer_store_dwordx4 v[108:111], v114, s[32:35], s55 offen sc1")
    a("s_mov_b64 exec, -1")
    a(f"ds_write_b32 v99, v117 offset:{L_PUB}")
    stamp(5)
    a("L_kv_after:")
    a("s_cmp_lg_u32 s3, 0"); a("s_cbranch_scc1 L_exit")
    a("s_cmp_ge_u32 s50, 13"); a("s_cbranch_scc1 L_exit")
    if opt.get("nopoll"): a("s_branch L_exit")
    a("s_setprio 3")
    wait_kv_flags(13, 14)
    a("s_cmp_lt_u32 s50, 9"); a("s_cbranch_scc1 L_h4poll")
    a("s_sub_u32 s61, s50, 9"); a(f"s_mul_i32 s61, s61, {H2_STRIDE}"); a("s_add_u32 s53, s53, s61")
    a("s_add_u32 s54, s53, 4096"); a("s_add_u32 s55, s53, 8192")
    a("v_lshrrev_b32 v12, 5, v1"); a("v_xor_b32 v12, v12, v2"); a("v_lshlrev_b32 v12, 4, v12")
    top = lbl("h2"); done = lbl("h2d")
    a(f"{top}:")
    a("buffer_load_dwordx4 v[64:67], v12, s[32:35], s55 offen sc1")
    for u in range(8):
        a(f"buffer_load_dwordx4 v[{32+4*u}:{35+4*u}], v23, s[32:35], s{53+(u>>2)} offen offset:{1024*(u&3)} sc1")
    a("s_waitcnt vmcnt(0)")
    check_tags([65, 67] + [33 + 2 * i for i in range(16)], 13)
    a(f"s_cbranch_vccz {done}")
    spin_tail(top, opt.get("h2sleep", None))
    a(f"{done}:")
    stamp(6)
    a("v_max_f32_dpp v16, v64, v64 row_ror:8 row_mask:0xf bank_mask:0xf")
    for r in (4, 2, 1): a(f"v_max_f32_dpp v16, v16, v16 row_ror:{r} row_mask:0xf bank_mask:0xf")
    a("v_sub_f32 v16, v64, v16"); a("v_exp_f32 v16, v16")
    a("v_mul_f32 v17, v16, v66")
    for u in range(8):
        for e in range(2):
            op = "v_mul_f32_dpp" if u == 0 else "v_fmac_f32_dpp"
            a(f"{op} v{18+e}, v16, v{32+4*u+2*e} row_newbcast:{2*u} row_mask:0xf bank_mask:0xf")
        if u < 4: a(f"v_add_f32_dpp v17, v17, v17 row_ror:{8>>u} row_mask:0xf bank_mask:0xf")
    a("v_rcp_f32 v17, v17")
    a("v_permlane32_swap_b32 v18, v19")
    a("v_add_f32 v18, v18, v19")
    a("v_mul_f32 v18, v18, v17")
    a("v_cvt_pk_bf16_f32 v18, v18, v18")
    a("v_and_b32 v19, 31, v1"); a("v_lshlrev_b32 v19, 3, v19"); a("v_lshrrev_b32 v20, 5, v1"); a("v_lshl_add_u32 v19, v20, 2, v19")
    a(f"ds_write_b32 v19, v18 offset:{L_VEC}")
    a("s_waitcnt lgkmcnt(0)")
    a("s_barrier")
    stamp(7)
    a("s_branch L_exit")

    a("L_h4poll:")
    a("s_and_b32 s61, s2, 7"); a(f"s_mul_i32 s61, s61, {H4_STRIDE}"); a(f"s_add_u32 s53, s61, {H4_BASE}")
    a("v_lshlrev_b32 v23, 4, v1")
    for r in range(32, 44, 2): a(f"v_mov_b32 v{r}, 0"); a(f"v_mov_b32 v{r+1}, s48")
    top = lbl("h4"); done = lbl("h4d")
    a(f"{top}:")
    a("s_mov_b64 exec, s[56:57]")
    for u in range(3): a(f"buffer_load_dwordx4 v[{32+4*u}:{35+4*u}], v23, s[32:35], s53 offen offset:{768*u} sc1")
    a("s_mov_b64 exec, -1")
    a("s_waitcnt vmcnt(0)")
    check_tags([33 + 2 * i for i in range(6)], 13)
    a(f"s_cbranch_vccz {done}")
    spin_tail(top, opt.get("h4sleep", 1))
    a(f"{done}:")
    stamp(6)
    layernorm([32 + 2 * i for i in range(6)], 44, 56)
    a("s_cmp_ge_u32 s3, 8"); a("s_cbranch_scc1 L_stats")
    vec_write(44, 12)
    a("s_waitcnt lgkmcnt(0)")
    a("s_barrier")
    stamp(7)
    a("s_branch L_exit")
    a("L_stats:")
    a("v_mov_b32 v56, 0")
    for i in range(6):
        a(f"v_and_b32 v57, 0xffff0000, v{44+2*i}"); a(f"v_lshlrev_b32 v58, 16, v{80+i}"); a("v_fmac_f32 v56, v57, v58")
        a(f"v_and_b32 v57, 0xffff0000, v{45+2*i}"); a(f"v_and_b32 v58, 0xffff0000, v{80+i}"); a("v_fmac_f32 v56, v57, v58")
    wave_sum(56, 57)
    rnd(56)
    a(f"v_mul_f32 v56, {0xbfb8aa3b:#x}, v56"); a("v_exp_f32 v56, v56"); a("v_add_f32 v56, 1.0, v56"); a("v_rcp_f32 v56, v56")
    rnd(56)
    a(f"v_mul_u32_u24 v57, {2*H5_STRIDE}, v1")
    a("s_mov_b32 s61, 0xffff")
    a("s_mov_b64 exec, s[56:57]")
    for u in range(3):
        for e in range(2):
            b = 88 + 4 * ((2 * u + e) & 1)
            a(f"v_bfi_b32 v{b}, s61, v{44+4*u+2*e}, v{45+4*u+2*e}")
            a(f"v_mov_b32 v{b+1}, s48"); a(f"v_mov_b32 v{b+2}, v56"); a(f"v_mov_b32 v{b+3}, s48")
            a(f"s_mov_b32 s62, {H5_BASE + 144*16 + (96*u+e)*H5_STRIDE}")
            a(f"buffer_store_dwordx4 v[{b}:{b+3}], v57, s[32:35], s62 offen sc1")
    a("s_mov_b64 exec, -1")
    stamp(7)
    a("s_branch L_exit")

    a("L_W:")
    a("s_sub_u32 s63, s3, 8")
    a("s_cmp_lg_u32 s63, 0"); a("s_cbranch_scc1 L_W_role")
    a("s_setprio 3")
    srd(44, 4, 1152); srd(36, 10, 576 * 8192)
    for r in range(8, 14): a(f"v_mov_b32 v{r}, 0")
    a("v_lshlrev_b32 v120, 3, v1")
    a("s_mov_b64 exec, s[56:57]")
    for u in range(3): a(f"buffer_load_dwordx2 v[{8+2*u}:{9+2*u}], v120, s[44:47], 0 offen offset:{384*u}")
    a("s_mov_b64 exec, -1")
    cls(121)
    a("v_and_b32 v122, 7, v1"); a("v_lshlrev_b32 v122, 4, v122"); a("v_lshl_add_u32 v122, v121, 13, v122")
    a("s_lshr_b32 s51, s50, 2"); a("s_lshl_b32 s52, s51, 17"); a("s_lshl_b32 s53, s49, 9"); a("s_add_u32 s52, s52, s53")
    a("s_and_b32 s53, s50, 3"); a("s_lshl_b32 s54, s53, 7"); a("s_add_u32 s52, s52, s54")
    for t in range(9):
        a(f"buffer_load_dwordx4 v[{32+8*t}:{35+8*t}], v122, s[36:39], s52 offen nt")
        a("s_add_u32 s54, s52, 65536")
        a(f"buffer_load_dwordx4 v[{36+8*t}:{39+8*t}], v122, s[36:39], s54 offen nt")
        if t < 8: a("s_add_u32 s52, s52, 524288")
    a("s_barrier")
    stamp(1)
    a("s_waitcnt vmcnt(18)")
    layernorm([8 + i for i in range(6)], 16, 104)
    vec_write(16, 120)
    masks()
    a("s_lshl_b32 s54, s51, 6"); a("v_lshl_add_u32 v120, v121, 2, s54"); a("v_add_u32 v123, 32, v120")
    a("s_waitcnt lgkmcnt(0)")
    for kk, ad in ((0, 120), (1, 123)):
        b = 8 + 10 * kk
        for t in range(0, 8, 2): a(f"ds_read2st64_b32 v[{b+t}:{b+t+1}], v{ad} offset0:{t} offset1:{t+1}")
        a(f"ds_read_b32 v{b+8}, v{ad} offset:{8*256}")
    tag_ready()
    vals = []; wr = []; waits = []
    for t in range(9):
        for kk in range(2):
            vals.append(8 + 10 * kk + t); wr.append([32 + 8 * t + 4 * kk]); waits.append(f"s_waitcnt vmcnt({17-2*t-kk})")
    sel_mfma(vals, wr, [112], AB=104, waits=waits)
    a("v_mov_b32 v117, s48"); a("v_mov_b32 v119, s48")
    cp_local(120, 123); a("v_lshlrev_b32 v120, 4, v120")
    a("s_lshl_b32 s52, s49, 13"); a(f"s_add_u32 s52, s52, {H1_BASE}")
    a("s_lshl_b32 s54, s51, 11"); a("s_add_u32 s54, s54, s52"); a("s_lshl_b32 s55, s53, 9"); a("s_add_u32 s54, s54, s55")
    fold(112, 116, 118)
    a("s_mov_b64 exec, s[58:59]")
    a("buffer_store_dwordx4 v[116:119], v120, s[32:35], s54 offen sc1")
    a("s_mov_b64 exec, -1")
    stamp(2)
    a("s_add_u32 s53, s52, 4096")
    a("v_lshlrev_b32 v120, 4, v1")
    if opt.get("h1wait", 1): a("s_waitcnt vmcnt(0)")
    top = lbl("h1"); done = lbl("h1d")
    a(f"{top}:")
    for u in range(8):
        a(f"buffer_load_dwordx4 v[{32+4*u}:{35+4*u}], v120, s[32:35], s{52+(u>>2)} offen offset:{1024*(u&3)} sc1")
    a("s_waitcnt vmcnt(0)")
    check_tags([33 + 2 * i for i in range(16)], 123)
    a(f"s_cbranch_vccz {done}")
    spin_tail(top, 1)
    a(f"{done}:")
    for h in range(2):
        for e in range(2):
            b = 32 + 4 * h + 2 * e
            a(f"v_add_f32 v{b}, v{b}, v{b+8}"); a(f"v_add_f32 v{b+16}, v{b+16}, v{b+24}"); a(f"v_add_f32 v{b}, v{b}, v{b+16}")
    a("v_cvt_pk_bf16_f32 v8, v32, v34"); a("v_cvt_pk_bf16_f32 v9, v36, v38")
    a("v_lshlrev_b32 v120, 2, v1")
    a(f"ds_write_b32 v120, v8 offset:{L_QB}"); a(f"ds_write_b32 v120, v9 offset:{L_QB+256}")
    a("v_mov_b32 v121, 0"); a("v_mov_b32 v122, 1")
    a("s_waitcnt lgkmcnt(0)")
    a(f"ds_write_b32 v121, v122 offset:{L_QF}")
    stamp(3)
    a("s_setprio 0")
    a("s_branch L_W_role2")
    a("L_W_role:")
    a("s_barrier")
    tag_ready()
    a("L_W_role2:")
    a("s_cmp_ge_u32 s50, 13"); a("s_cbranch_scc1 L_plain")
    a("s_cmp_ge_u32 s50, 9"); a("s_cbranch_scc1 L_wo")

    a("s_and_b32 s51, s49, 7"); a("s_mul_i32 s51, s51, 18"); a("s_lshr_b32 s52, s49, 3"); a("s_mul_i32 s52, s52, 9")
    a("s_add_u32 s51, s51, s52"); a("s_add_u32 s51, s51, s50")
    srd(40, 22, 4608 * 1152)
    cls(121)
    a("v_bfe_u32 v122, v1, 2, 1"); a("v_cmp_eq_u32 vcc, 1, v122")
    a("v_mov_b32 v124, s18"); a("v_mov_b32 v125, s19"); a("v_mov_b32 v126, s20"); a("v_mov_b32 v127, s21")
    a("v_cndmask_b32 v124, v124, v126, vcc"); a("v_cndmask_b32 v125, v125, v127, vcc")
    a("s_lshl_b32 s52, s63, 3"); a("v_add_u32 v122, s52, v121"); a("v_mul_u32_u24 v122, 9216, v122")
    a("v_and_b32 v123, 3, v1"); a("v_lshl_add_u32 v122, v123, 4, v122")
    a("s_lshl_b32 s52, s51, 6"); a("v_add_u32 v122, s52, v122"); a("v_mov_b32 v123, 0")
    a("v_lshl_add_u64 v[124:125], v[122:123], 0, v[124:125]")
    a(f"s_mov_b32 s54, {64*9216}"); a("s_mov_b32 s55, 0")
    wgate(opt.get("ffngate", "issued"))
    fd = opt.get("ffndepth", 0)
    for t in range(9):
        throttle(t, fd)
        a(f"global_load_dwordx4 v[{32+4*t}:{35+4*t}], v[124:125], off nt")
        if t < 8: a("v_lshl_add_u64 v[124:125], v[124:125], 0, s[54:55]")
    a(f"v_mul_u32_u24 v122, {4*1152}, v121"); a("v_and_b32 v123, 7, v1"); a("v_lshl_add_u32 v122, v123, 4, v122")
    a(f"s_mul_i32 s52, s51, {32*1152}"); a("s_lshl_b32 s53, s63, 7"); a("s_add_u32 s52, s52, s53")
    for t in range(4): a(f"buffer_load_dwordx4 v[{68+4*t}:{71+4*t}], v122, s[40:43], s52 offen offset:{1152*t} nt")
    a("s_cmp_lg_u32 s63, 7"); a("s_cbranch_scc1 L_ffn_a")
    for t in range(4): a(f"buffer_load_dwordx4 v[{84+4*t}:{87+4*t}], v122, s[40:43], s52 offen offset:{1152*t+128} nt")
    a("L_ffn_a:")
    stamp(4)
    masks()
    a("v_mov_b32 v117, s48"); a("v_mov_b32 v119, s48")
    a("s_lshl_b32 s52, s63, 5"); a("v_lshl_add_u32 v120, v121, 2, s52")
    cp_local(122, 123)
    a("s_lshl_b32 s52, s63, 8"); a("v_lshl_add_u32 v123, v122, 3, s52")
    a(f"v_mul_u32_u24 v122, {H5_STRIDE}, v122")
    a("v_lshlrev_b32 v124, 2, v1")
    a("s_lshl_b32 s52, s63, 7"); a("v_add_u32 v125, s52, v124")
    a("v_lshl_add_u32 v126, v121, 4, s52")
    a(f"s_mul_i32 s52, s63, {32*H5_STRIDE}"); a("s_lshl_b32 s53, s51, 4"); a("s_add_u32 s52, s52, s53"); a(f"s_add_u32 s52, s52, {H5_BASE}")
    a(f"s_add_u32 s53, s52, {32*H5_STRIDE}")
    a("s_waitcnt vmcnt(0)")
    stamp(5)
    if opt.get("nopub"): a("s_branch L_exit")
    a("s_barrier")
    for t in range(0, 8, 2): a(f"ds_read2st64_b32 v[{16+t}:{17+t}], v120 offset0:{t} offset1:{t+1}")
    a(f"ds_read_b32 v24, v120 offset:{8*256}")
    a("s_waitcnt lgkmcnt(0)")
    sel_mfma([16 + t for t in range(9)], [[32 + 4 * t] for t in range(9)], [112], AB=104)
    fold(112, 8, 9)
    a("s_mov_b64 exec, s[58:59]")
    a(f"ds_write_b64 v123, v[8:9] offset:{L_GU}")
    a("s_mov_b64 exec, -1")
    a("s_waitcnt lgkmcnt(0)")
    a("s_barrier")
    assert L_GU % 256 == 0
    for t in range(0, 8, 2): a(f"ds_read2st64_b32 v[{16+t}:{17+t}], v124 offset0:{L_GU//256+t} offset1:{L_GU//256+t+1}")
    a("s_waitcnt lgkmcnt(0)")
    for t in range(0, 8, 2): a(f"v_add_f32 v{16+t}, v{16+t}, v{17+t}")
    a("v_add_f32 v16, v16, v18"); a("v_add_f32 v20, v20, v22"); a("v_add_f32 v16, v16, v20")
    rnd(16)
    a(f"v_mul_f32 v17, {0xbfb8aa3b:#x}, v16"); a("v_exp_f32 v17, v17"); a("v_add_f32 v17, 1.0, v17"); a("v_rcp_f32 v17, v17")
    a("v_mul_f32 v17, v17, v16"); rnd(17)
    a("v_permlane32_swap_b32 v16, v18")
    a("v_mul_f32 v17, v17, v18"); a("v_cvt_pk_bf16_f32 v17, v17, v17")
    a("s_mov_b32 exec_hi, 0")
    a(f"ds_write_b32 v125, v17 offset:{L_ACT}")
    a("s_mov_b64 exec, -1")
    a("s_waitcnt lgkmcnt(0)")
    a(f"ds_read_b128 v[16:19], v126 offset:{L_ACT}")
    a("s_waitcnt lgkmcnt(0)")
    stamp(6)
    a("s_cmp_eq_u32 s63, 7"); a("s_cbranch_scc1 L_ffn_b")
    sel_mfma([16 + t for t in range(4)], [[68 + 4 * t] for t in range(4)], [112], AB=104)
    fold(112, 116, 118)
    a("s_mov_b64 exec, s[58:59]")
    a("buffer_store_dwordx4 v[116:119], v122, s[32:35], s52 offen sc1")
    stamp(7)
    a("s_branch L_exit")
    a("L_ffn_b:")
    a("v_mov_b32 v13, s48"); a("v_mov_b32 v15, s48")
    sel_mfma([16 + t for t in range(4)], [[68 + 4 * t, 84 + 4 * t] for t in range(4)], [112, 8], AB=104)
    fold(112, 116, 118); fold(8, 12, 14)
    a("s_mov_b64 exec, s[58:59]")
    a("buffer_store_dwordx4 v[116:119], v122, s[32:35], s52 offen sc1")
    a("buffer_store_dwordx4 v[12:15], v122, s[32:35], s53 offen sc1")
    stamp(7)
    a("s_branch L_exit")

    a("L_wo:")
    a("s_sub_u32 s51, s50, 9"); a("s_lshl_b32 s52, s49, 2"); a("s_add_u32 s51, s51, s52")
    srd(40, 12, 4096 * 1152)
    cls(121)
    a(f"v_mul_u32_u24 v122, {8*1152}, v121"); a("v_and_b32 v123, 7, v1"); a("v_lshl_add_u32 v122, v123, 4, v122")
    a(f"s_mul_i32 s52, s51, {64*1152}"); a("s_lshl_b32 s53, s63, 7"); a("s_add_u32 s52, s52, s53")
    a(f"s_add_u32 s53, s52, {3*1152}"); a(f"s_add_u32 s54, s52, {6*1152}")
    wgate(opt.get("wogate", "issued"))
    for t in range(8): a(f"buffer_load_dwordx4 v[{32+4*t}:{35+4*t}], v122, s[40:43], s{52+t//3} offen offset:{1152*(t%3)} nt")
    a("s_cmp_lg_u32 s63, 7"); a("s_cbranch_scc1 L_wo_a")
    for t in range(8): a(f"buffer_load_dwordx4 v[{64+4*t}:{67+4*t}], v122, s[40:43], s{52+t//3} offen offset:{1152*(t%3)+128} nt")
    a("L_wo_a:")
    stamp(4)
    masks()
    a("v_mov_b32 v117, s48"); a("v_mov_b32 v119, s48"); a("v_mov_b32 v13, s48"); a("v_mov_b32 v15, s48")
    a("v_lshlrev_b32 v120, 5, v121")
    cp_local(122, 123); a(f"v_mul_u32_u24 v122, {H3_STRIDE}, v122")
    a(f"s_mul_i32 s52, s63, {32*H3_STRIDE}"); a("s_lshl_b32 s53, s51, 4"); a("s_add_u32 s52, s52, s53"); a(f"s_add_u32 s52, s52, {H3_BASE}")
    a(f"s_add_u32 s53, s52, {32*H3_STRIDE}")
    a("s_waitcnt vmcnt(0)")
    stamp(5)
    if opt.get("nopub"): a("s_branch L_exit")
    a("s_barrier")
    a(f"ds_read_b128 v[16:19], v120 offset:{L_VEC}"); a(f"ds_read_b128 v[20:23], v120 offset:{L_VEC+16}")
    a("s_waitcnt lgkmcnt(0)")
    stamp(6)
    a("s_cmp_eq_u32 s63, 7"); a("s_cbranch_scc1 L_wo_b")
    sel_mfma([16 + t for t in range(8)], [[32 + 4 * t] for t in range(8)], [112], AB=104)
    fold(112, 116, 118)
    a("s_mov_b64 exec, s[58:59]")
    a("buffer_store_dwordx4 v[116:119], v122, s[32:35], s52 offen sc1")
    stamp(7)
    a("s_branch L_exit")
    a("L_wo_b:")
    sel_mfma([16 + t for t in range(8)], [[32 + 4 * t, 64 + 4 * t] for t in range(8)], [112, 8], AB=104)
    fold(112, 116, 118); fold(8, 12, 14)
    a("s_mov_b64 exec, s[58:59]")
    a("buffer_store_dwordx4 v[116:119], v122, s[32:35], s52 offen sc1")
    a("buffer_store_dwordx4 v[12:15], v122, s[32:35], s53 offen sc1")
    stamp(7)
    a("s_branch L_exit")

    a("L_plain:")
    if opt.get("nopoll"): a("s_branch L_exit")
    a("s_cmp_eq_u32 s63, 0"); a("s_cbranch_scc1 L_exit")
    a("s_mul_i32 s51, s49, 3"); a("s_add_u32 s51, s51, s50"); a("s_sub_u32 s51, s51, 13")
    a("s_cmp_lg_u32 s63, 7"); a("s_cbranch_scc1 L_red")
    a("s_cmp_lg_u32 s51, 0"); a("s_cbranch_scc1 L_exit")
    srd(44, 16, 1152)
    for r in range(80, 86): a(f"v_mov_b32 v{r}, 0")
    a("v_lshlrev_b32 v120, 3, v1")
    a("s_mov_b64 exec, s[56:57]")
    for u in range(3): a(f"buffer_load_dwordx2 v[{80+2*u}:{81+2*u}], v120, s[44:47], 0 offen offset:{384*u}")
    a("s_mov_b64 exec, -1")
    wait_kv_flags(13, 14)
    a("s_branch L_h4poll")
    a("L_red:")
    a("s_mul_i32 s51, s51, 6"); a("s_add_u32 s51, s51, s63"); a("s_sub_u32 s51, s51, 1")
    a("s_lshl_b32 s52, s51, 2")
    a("s_load_dword s62, s[4:5], s52")
    srd(44, 24, 1152)
    a("v_lshlrev_b32 v23, 4, v1")
    a(f"s_mul_i32 s53, s51, {H3_STRIDE}"); a(f"s_add_u32 s53, s53, {H3_BASE}")
    a(f"s_mul_i32 s54, s51, {H5_STRIDE}"); a(f"s_add_u32 s54, s54, {H5_BASE}")
    a("s_lshl_b32 s55, s51, 3"); a(f"s_add_u32 s55, s55, {H4_BASE}")
    a(f"v_mul_u32_u24 v24, {H4_STRIDE}, v1")
    a("v_mov_b32 v27, s48")
    a("v_mov_b32 v40, 0"); a("v_mov_b32 v41, s48"); a("v_mov_b32 v42, 0"); a("v_mov_b32 v43, s48")
    a("v_cmp_gt_u32 s[30:31], 32, v1")
    a("v_lshrrev_b32 v25, 5, v1"); a("v_lshlrev_b32 v25, 1, v25")
    a("s_waitcnt lgkmcnt(0)")
    a("s_lshl_b32 s61, s62, 16"); a("s_and_b32 s62, s62, 0xffff0000")
    a("v_mov_b32 v20, s62"); a("v_mov_b32 v21, s61"); a("v_cndmask_b32 v20, v20, v21, s[30:31]")
    wait_kv_flags(13, 14)
    a("s_setprio 3")
    stamp(4)
    top = lbl("h3"); done = lbl("h3d")
    a(f"{top}:")
    a("buffer_load_dwordx4 v[32:35], v23, s[32:35], s53 offen sc1")
    a("s_waitcnt vmcnt(0)")
    check_tags([33, 35], 13)
    a(f"s_cbranch_vccz {done}")
    spin_tail(top, opt.get("h3sleep", None))
    a(f"{done}:")
    stamp(5)
    def half_sum(x, y, t):
        a(f"v_permlane32_swap_b32 v{x}, v{y}"); a(f"v_add_f32 v{x}, v{x}, v{y}")
        for r in (8, 4, 2, 1): a(f"v_add_f32_dpp v{x}, v{x}, v{x} row_ror:{r} row_mask:0xf bank_mask:0xf")
        a(f"v_mov_b32 v{t}, v{x}"); a(f"v_permlane16_swap_b32 v{x}, v{t}"); a(f"v_add_f32 v{x}, v{x}, v{t}")
    half_sum(32, 34, 13)
    rnd(32)
    a("v_add_f32 v20, v20, v32"); rnd(20)
    a("v_readlane_b32 s61, v20, 32")
    a("v_lshrrev_b32 v26, 16, v20"); a("v_or_b32 v26, s61, v26")
    a(f"s_mov_b64 exec, {(1<<H4_REPS)-1:#x}")
    a("buffer_store_dwordx2 v[26:27], v24, s[32:35], s55 offen sc1")
    a("s_mov_b64 exec, -1")
    stamp(6)
    top = lbl("h5"); done = lbl("h5d")
    a(f"{top}:")
    a("buffer_load_dwordx4 v[32:35], v23, s[32:35], s54 offen sc1")
    a("buffer_load_dwordx4 v[36:39], v23, s[32:35], s54 offen offset:1024 sc1")
    a("s_mov_b64 exec, 0x1ffff")
    a("buffer_load_dwordx4 v[40:43], v23, s[32:35], s54 offen offset:2048 sc1")
    a("s_mov_b64 exec, -1")
    a("s_waitcnt vmcnt(0)")
    check_tags([33, 35, 37, 39, 41, 43], 13)
    a(f"s_cbranch_vccz {done}")
    spin_tail(top, opt.get("h5sleep", None))
    a(f"{done}:")
    a("v_readlane_b32 s61, v40, 16"); a("v_readlane_b32 s62, v42, 16")
    a("v_add_f32 v32, v32, v36"); a("v_add_f32 v34, v34, v38")
    a("s_mov_b64 exec, 0xffff")
    a("v_add_f32 v32, v32, v40"); a("v_add_f32 v34, v34, v42")
    a("s_mov_b64 exec, -1")
    a("s_lshl_b32 s53, s61, 16"); a("s_and_b32 s61, s61, 0xffff0000")
    a("v_mov_b32 v21, s61"); a("v_mov_b32 v22, s53"); a("v_cndmask_b32 v21, v21, v22, s[30:31]")
    half_sum(32, 34, 13)
    rnd(32)
    a("v_mul_f32 v32, s62, v32"); rnd(32)
    a("v_add_f32 v32, v21, v32"); rnd(32)
    a("v_add_f32 v32, v20, v32"); a("v_cvt_pk_bf16_f32 v32, v32, v32")
    a("s_mov_b32 exec_lo, 1"); a("s_mov_b32 exec_hi, 1")
    a("buffer_store_short v32, v25, s[44:47], s52 offen")
    a("s_cmp_lg_u32 s51, 0"); a("s_cbranch_scc1 L_red_end")
    a("s_mov_b64 exec, 1")
    a("buffer_store_dword v27, v25, s[32:35], 0 offen sc1")
    a("L_red_end:")
    stamp(7)
    a("L_exit:")
    if diag == "dbg":
        a("s_waitcnt lgkmcnt(0)")
        srd(44, 26, 256)
        a("s_mov_b64 exec, 1"); a("v_mov_b32 v1, 0")
        a("s_lshl_b32 s61, s2, 4"); a("s_add_u32 s61, s61, s3")
        for n, (wg, wv, st) in enumerate(opt.get("dbgsel", [(104, 9, (0, 4, 5, 7)), (0, 9, (0, 4, 5, 7)), (0, 0, (1, 4, 6, 7)), (72, 0, (2, 4, 6, 7))])):
            nx = lbl("dbg")
            a(f"s_cmp_lg_u32 s61, {wg*16+wv}"); a(f"s_cbranch_scc1 {nx}")
            for i, k in enumerate(st): a(f"v_mov_b32 v{8+i}, s{64+2*k}")
            a(f"buffer_store_dwordx4 v[8:11], v1, s[44:47], 0 offen offset:{16*n}")
            a(f"{nx}:")
    elif diag:
        a("s_mov_b64 exec, 1")
        a("s_waitcnt lgkmcnt(0)")
        for i in range(8): a(f"v_mov_b32 v{8+i}, s{64+2*i}")
        a("s_lshl_b32 s61, s2, 9"); a("s_lshl_b32 s62, s3, 5"); a("s_add_u32 s61, s61, s62"); a(f"s_add_u32 s61, s61, {STAMP_BASE}")
        a("v_mov_b32 v1, 0")
        a("buffer_store_dwordx4 v[8:11], v1, s[32:35], s61 offen")
        a("buffer_store_dwordx4 v[12:15], v1, s[32:35], s61 offen offset:16")
    a("L_end:")
    a("s_endpgm")
    a.raw('.section .rodata,"a"'); a.raw(".p2align 6")
    a.raw(f".amdhsa_kernel {NAME}_kernel")
    a.raw("  .amdhsa_next_free_vgpr 128"); a.raw("  .amdhsa_next_free_sgpr 96"); a.raw("  .amdhsa_accum_offset 128")
    a.raw("  .amdhsa_group_segment_fixed_size 0"); a.raw("  .amdhsa_kernarg_size 104")
    a.raw("  .amdhsa_user_sgpr_count 2"); a.raw("  .amdhsa_user_sgpr_kernarg_segment_ptr 1"); a.raw("  .amdhsa_system_sgpr_workgroup_id_x 1")
    a.raw("  .amdhsa_float_denorm_mode_32 3")
    a.raw(".end_amdhsa_kernel")
    return a.text()

if __name__ == "__main__":
    diag = "dbg" if "--dbg" in sys.argv else ("--diag" in sys.argv)
    out = [x for x in sys.argv[1:] if not x.startswith("--")][0]
    open(out, "w").write(gen(diag=diag))

def report(show, w, j, rel):
    allw = w >= 0
    show("KV all", allw, list(range(8)))
    show("KV0 ffn(h4)", j < 9, [0])
    show("KV0 wo(h2)", (j >= 9) & (j < 13), [0])
    show("Q wave", allw, [8])
    show("W ffn", j < 9, list(range(8, 16)))
    show("W wo", (j >= 9) & (j < 13), list(range(8, 16)))
    show("reducers", j >= 13, list(range(9, 15)))
    show("stats", w == 13 * 8, [15])
```
